```python
import torch

def _softmax(x, axis=-1):
    return torch.softmax(x, dim=axis)
def _gelu(x):
    return torch.nn.functional.gelu(x, approximate="tanh")
def _silu(x):
    return torch.nn.functional.silu(x)
def _sigmoid(x):
    return torch.sigmoid(x)
def _layernorm(x, axis=-1, eps=1e-5):
    m = x.mean(dim=axis, keepdim=True)
    v = x.var(dim=axis, keepdim=True, unbiased=False)
    return (x - m) / torch.sqrt(v + eps)
def _scatter_add(tgt, idx, src, axis=0):
    return tgt.clone().index_add_(axis, idx, src)
def _segment_sum(src, seg, n):
    out = torch.zeros((n,) + src.shape[1:], dtype=src.dtype)
    return out.index_add_(0, seg, src)
def _pad(x, pw):
    flat = tuple(v for pair in reversed(pw) for v in pair)
    return torch.nn.functional.pad(x, flat)

kernel_name = 'standalone__gqa_block_cached__near_ridge'

def setup_inputs():

    _w = (lambda a: (lambda t: t.to(torch.bfloat16) if t.is_floating_point() else t)(torch.as_tensor(a)))
    B, Sq, D = 16, 128, 640
    Hq, Hkv, Sk, Dh = 32, 32, 1024, 128
    assert Hq % Hkv == 0, (Hq, Hkv)
    return {
        "x": _w((lambda *s: torch.randn(*s, dtype=torch.bfloat16) * 0.8)(B, Sq, D)),
        "k_cache": _w((lambda *s: torch.randn(*s, dtype=torch.bfloat16) * 0.8)(B, Hkv, Sk, Dh)),
        "v_cache": _w((lambda *s: torch.randn(*s, dtype=torch.bfloat16) * 0.05)(B, Hkv, Sk, Dh)),
        "wq": _w((lambda *s: torch.randn(*s, dtype=torch.bfloat16) * 0.8)(D, Hq * Dh) * (D ** -0.5)),
        "wo": _w((lambda *s: torch.randn(*s, dtype=torch.bfloat16) * 0.05)(Hq * Dh, D) * ((Hq * Dh) ** -0.5)),
    }

def reference(x, k_cache, v_cache, wq, wo):
    B, Sq, D = x.shape
    Hq, Dh = 32, 128
    Hkv = k_cache.shape[1]
    rep = Hq // Hkv
    q = (lambda x, *d: x.permute(*d))((x @ wq).reshape(B, Sq, Hq, Dh), 0, 2, 1, 3)
    k = (lambda x, n, axis: torch.repeat_interleave(x, n, dim=axis))(k_cache, rep, axis=1)
    v = (lambda x, n, axis: torch.repeat_interleave(x, n, dim=axis))(v_cache, rep, axis=1)
    scores = torch.einsum("bhqd,bhkd->bhqk", q, k) * (Dh ** -0.5)
    p = _softmax(scores, axis=-1)
    o = torch.einsum("bhqk,bhkd->bhqd", p, v)
    return (lambda x, *d: x.permute(*d))(o, 0, 2, 1, 3).reshape(B, Sq, Hq * Dh) @ wo
```

```python
import re

def v(n, c=1):
    return f"v{n}" if c == 1 else f"v[{n}:{n+c-1}]"
def s(n, c=1):
    return f"s{n}" if c == 1 else f"s[{n}:{n+c-1}]"

_REG = re.compile(r"^(-|\|)?(abs\()?([vs])(\d+|\[(\d+):(\d+)\])\)?\|?$")
def regs(tok):
    tok = tok.strip()
    if tok in ("vcc", "vcc_lo", "vcc_hi"): return ("s", {106, 107})
    if tok == "exec": return ("s", {126, 127})
    if tok == "m0": return ("s", {124})
    m = _REG.match(tok)
    if not m: return None
    if m.group(5) is not None:
        return (m.group(3), set(range(int(m.group(5)), int(m.group(6)) + 1)))
    return (m.group(3), {int(m.group(4))})

TRANS = ("v_exp_f32", "v_log_f32", "v_rcp_f32", "v_rsq_f32", "v_sqrt_f32", "v_sin_f32", "v_cos_f32")

class Ins:
    __slots__ = ("text", "op", "kind", "vr", "vw", "sr", "sw", "passes", "A", "B", "C", "D", "wide", "data", "lds", "target")
    def __init__(self, text):
        self.text = text
        t = text.split(";")[0].strip()
        self.vr, self.vw, self.sr, self.sw = set(), set(), set(), set()
        self.passes = 0; self.A = self.B = self.C = self.D = set(); self.wide = False; self.data = set()
        self.lds = False; self.target = None
        if t.endswith(":"):
            self.op = t[:-1]; self.kind = "label"; return
        if t.startswith(".") or not t:
            self.op = t; self.kind = "dir"; return
        parts = t.split(None, 1)
        op = parts[0]; self.op = op
        rest = parts[1] if len(parts) > 1 else ""
        ops = [o.strip() for o in rest.split(",")] if rest else []
        mods = []
        if ops:
            last = ops[-1].split()
            ops[-1] = last[0]; mods = last[1:]
        def rd(tok):
            r = regs(tok)
            if r: (self.vr if r[0] == "v" else self.sr).update(r[1])
        def wr(tok):
            r = regs(tok)
            if r: (self.vw if r[0] == "v" else self.sw).update(r[1])
        base = re.sub(r"_e(32|64)$", "", op)
        if op.startswith("v_mfma"):
            self.kind = "mfma"
            self.passes = 8 if "32x32" in op else 4
            g = lambda tok: (regs(tok)[1] if regs(tok) else set())
            self.D, self.A, self.B, self.C = g(ops[0]), g(ops[1]), g(ops[2]), g(ops[3])
            self.vw = set(self.D); self.vr = self.A | self.B | self.C
        elif op.startswith("v_"):
            self.kind = "valu"
            if base.startswith("v_permlane") and "swap" in base:
                for o in ops: rd(o); wr(o)
            elif base in ("v_add_co_u32", "v_sub_co_u32", "v_addc_co_u32"):
                wr(ops[0]); wr(ops[1])
                for o in ops[2:]: rd(o)
            else:
                wr(ops[0])
                for o in ops[1:]: rd(o)
                if base.startswith("v_fmac") or base.startswith("v_writelane"): rd(ops[0])
            self.sr |= {126, 127}
        elif op.startswith("ds_"):
            self.kind = "ds"
            if "read" in op or "permute" in op or "swizzle" in op:
                wr(ops[0])
                for o in ops[1:]: rd(o)
            else:
                for o in ops: rd(o)
        elif op.startswith("buffer_") or op.startswith("global_"):
            self.kind = "vmem"
            if op in ("buffer_inv", "buffer_wbl2"):
                return
            self.lds = "lds" in mods
            if self.lds:
                for o in ops: rd(o)
                self.sr.add(124)
            elif "load" in op:
                wr(ops[0])
                for o in ops[1:]: rd(o)
            else:
                for o in ops: rd(o)
                d = regs(ops[0] if op.startswith("buffer_") else ops[1])
                self.data = set(d[1])
                self.wide = "x3" in op or "x4" in op
                if "atomic" in op and "sc0" in mods: wr(ops[0])
        elif op.startswith("s_"):
            if op in ("s_waitcnt", "s_nop", "s_barrier", "s_endpgm", "s_setprio", "s_sleep"):
                self.kind = op
            elif op.startswith("s_cbranch") or op == "s_branch":
                self.kind = "branch"; self.target = ops[0]
                if "vcc" in op: self.sr |= {106, 107}
            elif op.startswith("s_load") or op in ("s_memtime", "s_memrealtime"):
                self.kind = "smem"; wr(ops[0])
                for o in ops[1:]: rd(o)
            elif op.startswith("s_cmp") or op.startswith("s_bitcmp"):
                self.kind = "salu"
                for o in ops: rd(o)
            else:
                self.kind = "salu"
                wr(ops[0])
                for o in ops[1:]: rd(o)
                if "saveexec" in op: self.sw |= {126, 127}; self.sr |= {126, 127}
        else:
            raise ValueError("unknown instruction: " + text)

    def states(self):
        if self.kind == "s_nop": return int(self.text.split()[1]) + 1
        if self.kind in ("label", "dir"): return 0
        return 1

def need(p, c):
    n = 0
    if p.kind == "valu":
        if c.kind == "mfma" and p.vw & c.vr: n = max(n, 2)
        if c.kind == "mfma" and p.sw & {126, 127}: n = max(n, 4)
        if c.kind == "valu":
            pb = re.sub(r"_e(32|64)$", "", p.op)
            if pb in TRANS and p.vw & c.vr: n = max(n, 1)
            if "permlane" in c.op and p.vw & c.vr: n = max(n, 2)
            if ("readlane" in c.op or "readfirstlane" in c.op) and p.vw & c.vr: n = max(n, 1)
            if p.sw & (c.sr - {126, 127}): n = max(n, 2)
            if ("readlane" in c.op or "writelane" in c.op) and p.sw & c.sr: n = max(n, 4)
        if c.kind == "vmem" and p.sw & c.sr: n = max(n, 5)
        if c.kind in ("salu", "branch") and p.sw & c.sr: n = max(n, 1)
    if p.kind == "mfma":
        big = p.passes == 8
        if c.kind == "mfma":
            if p.D & (c.A | c.B): n = max(n, 12 if big else 8)
            if p.D & c.C and not (p.D == c.C and p.passes == c.passes): n = max(n, 10 if big else 6)
            if p.D & c.D and not (p.D == c.C and p.passes == c.passes): n = max(n, 12 if big else 8)
        elif c.kind in ("valu", "ds", "vmem"):
            if p.D & (c.vr | c.vw): n = max(n, 12 if big else 8)
            if p.C & c.vw: n = max(n, 7 if big else 3)
    if p.kind == "salu" and 124 in p.sw and c.kind == "vmem" and c.lds: n = max(n, 1)
    if p.kind == "vmem" and p.wide and p.data & c.vw: n = max(n, 2)
    return n

class Asm:
    def __init__(self):
        self.out = []
        self.hist = []
        self.lgkm = []
        self.vm = []
        self.vmdst = []
        self.smem = False

    def raw(self, text):
        self.out.append(Ins(text))

    def comment(self, text):
        i = Ins(""); i.text = "; " + text; self.out.append(i)

    def label(self, name, soft=False):
        if not soft:
            self.hist = []
        self.out.append(Ins(name + ":"))

    def _push(self, i):
        self.out.append(i); self.hist.append(i)
        if len(self.hist) > 24: self.hist.pop(0)

    def __call__(self, text, tag=None):
        i = Ins(text)
        touch = i.vr | i.vw
        if touch and i.kind != "label":
            k = -1
            for n, d in enumerate(self.lgkm):
                if d & touch: k = n
            if k >= 0:
                assert not self.smem, "SMEM outstanding with counted lgkm wait"
                cnt = len(self.lgkm) - 1 - k
                self._push(Ins(f"s_waitcnt lgkmcnt({min(cnt, 15)})"))
                self.lgkm = self.lgkm[k + 1:] if cnt <= 15 else self.lgkm[len(self.lgkm) - 15:]
            for n, d in enumerate(self.vmdst):
                assert not (d & touch), f"VMEM result {sorted(d & touch)} touched before wait: {text}"
        dist = 0; pad = 0
        for p in reversed(self.hist):
            pad = max(pad, need(p, i) - dist)
            dist += p.states()
            if dist > 20: break
        while pad > 0:
            k = min(pad, 16)
            self._push(Ins(f"s_nop {k-1}")); pad -= k
        self._push(i)
        if i.kind == "ds":
            self.lgkm.append(set(i.vw))
        elif i.kind == "smem":
            self.smem = True
        elif i.kind == "vmem":
            self.vm.append(tag); self.vmdst.append(set(i.vw))
        elif i.kind == "s_waitcnt":
            m = re.search(r"lgkmcnt\((\d+)\)", text)
            if m:
                n = int(m.group(1))
                self.lgkm = self.lgkm[len(self.lgkm) - n:] if n < len(self.lgkm) and n > 0 else ([] if n == 0 else self.lgkm)
                if n == 0: self.smem = False
            m = re.search(r"vmcnt\((\d+)\)", text)
            if m:
                n = int(m.group(1))
                if n < len(self.vm):
                    self.vm = self.vm[len(self.vm) - n:] if n else []
                    self.vmdst = self.vmdst[len(self.vmdst) - n:] if n else []

    def wait_vm(self, *tags, extra=""):
        k = -1
        for n, t in enumerate(self.vm):
            if t in tags: k = n
        if k < 0:
            if extra: self(f"s_waitcnt {extra}")
            return
        cnt = len(self.vm) - 1 - k
        assert cnt <= 63
        self(f"s_waitcnt vmcnt({cnt}) {extra}".strip())

    def wait_lgkm0(self):
        if self.lgkm or self.smem: self("s_waitcnt lgkmcnt(0)")

    def text(self):
        return "\n".join((i.text if i.kind in ("label", "dir") else "    " + i.text) for i in self.out) + "\n"

def weave(a, mf, fill, budget=24):
    f = 0
    for m, (txt, needf) in enumerate(mf):
        while f < needf:
            assert fill[f][2] <= m, (fill[f], m)
            emit(a, fill[f][0]); f += 1
        emit(a, txt)
        used = 0
        while f < len(fill) and fill[f][2] <= m + 1 and used + fill[f][1] <= budget:
            used += fill[f][1]; emit(a, fill[f][0]); f += 1
    while f < len(fill):
        emit(a, fill[f][0]); f += 1

def emit(a, x):
    if callable(x): x()
    else: a(x)

def check_cfg(text):
    ins = []
    for line in text.splitlines():
        t = line.split(";")[0].strip()
        if not t: continue
        if t.startswith(".section") or t.startswith(".amdhsa") or t.startswith(".end_amdhsa"): continue
        ins.append(Ins(t))
    lab = {i.op: n for n, i in enumerate(ins) if i.kind == "label"}
    def succ(n):
        i = ins[n]
        if i.kind == "s_endpgm": return []
        if i.kind == "branch":
            t = [lab[i.target]]
            return t if i.op == "s_branch" else t + [n + 1]
        return [n + 1] if n + 1 < len(ins) else []
    probs = []
    for n, p in enumerate(ins):
        if p.kind not in ("valu", "mfma", "salu", "vmem"): continue
        seen = {}
        stack = [(m, 0) for m in succ(n)]
        while stack:
            m, d = stack.pop()
            if d > 12 or seen.get(m, 99) <= d: continue
            seen[m] = d
            c = ins[m]
            if need(p, c) > d:
                probs.append((n, p.text, m, c.text, d, need(p, c)))
            for k in succ(m): stack.append((k, d + c.states()))
    return probs
```

```python
import sys, struct, math
from asmlib import *

K1 = "standalone__gqa_block_cached__near_ridge_kernel"
K2 = "oproj_kernel"
def f2u(x): return struct.unpack("<I", struct.pack("<f", x))[0]
QSCALE = f2u(math.log2(math.e) / math.sqrt(128.0))

sX, sWQ, sK, sV, sO, sWO, sOUT, sDBG = 4, 8, 12, 16, 20, 24, 28, 32
sWAVE, sW4, sB, sHA, sHB, sROT = 36, 37, 38, 39, 40, 41
sXB, sKVA, sKVB, sM0W, sT, sSLOT, sDELTA, sTHR, sCLAMP, sTMP, sTMP2, sOST, sMYH, sQS = 42, 43, 44, 45, 46, 47, 48, 49, 50, 51, 52, 53, 54, 55
sPTR = 64
sTS = 80
vKD, vVD, vWD, vXO, vOS = 1, 5, 6, 10, 11
vL0, vL1, vL2, vL3 = 12, 13, 14, 15
vQ, vO, vS0, vS1, vNM, vP0, vP1, vKF, vVF = 16, 48, 112, 128, 144, 160, 168, 176, 208
vAK, vAV, vLS, vT0, vT1, vT2 = 240, 248, 252, 253, 254, 255
SLOT, WBASE = 32768, 98304

def header(a, name):
    a.raw(f".globl {name}"); a.raw(".p2align 8"); a.raw(f".type {name},@function"); a.label(name)

def srd(a, d, ptr, size):
    a(f"s_mov_b32 {s(d)}, {s(ptr)}"); a(f"s_mov_b32 {s(d+1)}, {s(ptr+1)}")
    a(f"s_mov_b32 {s(d+2)}, {size}"); a(f"s_mov_b32 {s(d+3)}, 0x20000")

def stamp(a, cfg, k):
    if cfg.get("stamps"):
        a(f"s_memrealtime {s(sTS + 2*k, 2)}"); a("s_waitcnt lgkmcnt(0)")

def dma_kv(a, cfg, skv, tile, slot, tag):
    nt = " nt" if cfg.get("nt", 1) else ""
    a(f"s_add_u32 {s(sTMP)}, {s(sROT)}, {tile}")
    a(f"s_and_b32 {s(sTMP)}, {s(sTMP)}, 15")
    a(f"s_lshl_b32 {s(sTMP)}, {s(sTMP)}, 14")
    a(f"s_add_u32 {s(sTMP)}, {s(sTMP)}, {s(skv)}")
    a(f"s_add_u32 m0, {s(sM0W)}, {slot*SLOT}")
    for j in range(4):
        a(f"buffer_load_dwordx4 {v(vKD+j)}, {s(sK,4)}, {s(sTMP)} offen offset:{j*1024}{nt} lds", tag)
    a(f"s_add_u32 m0, {s(sM0W)}, {slot*SLOT+16384}")
    for j in range(4):
        a(f"buffer_load_dwordx4 {v(vVD)}, {s(sV,4)}, {s(sTMP)} offen offset:{j*1024}{nt} lds", tag)

def dma_wq(a, shead, slab, ldsoff, tag):
    a(f"s_lshl_b32 {s(sTMP2)}, {s(shead)}, 8")
    a(f"s_add_u32 {s(sTMP2)}, {s(sTMP2)}, {slab*64*8192}")
    a(f"s_add_u32 m0, {s(sM0W)}, {ldsoff}")
    for j in range(4):
        a(f"buffer_load_dwordx4 {v(vWD+j)}, {s(sWQ,4)}, {s(sTMP2)} offen offset:{j*1024} lds", tag)

def load_x(a, slab, reg, tag):
    for ks in range(4):
        a(f"buffer_load_dwordx4 {v(reg+4*ks,4)}, {v(vXO)}, {s(sX,4)}, {s(sXB)} offen offset:{(slab*4+ks)*32}", tag)

def lane_fields(a):
    a(f"v_and_b32 {v(vL0)}, 63, v0")
    a(f"v_lshrrev_b32 {v(vL1)}, 4, {v(vL0)}")
    a(f"v_and_b32 {v(vL2)}, 15, {v(vL0)}")

def addr_dma(a, kv=True, wq=True):
    a(f"s_lshl_b32 {s(sTMP)}, {s(sW4)}, 4")
    a(f"v_add_u32 {v(vT0)}, {s(sTMP)}, {v(vL1)}")
    a(f"v_lshlrev_b32 {v(vT1)}, 2, {v(vL1)}")
    a(f"v_xor_b32 {v(vT1)}, {v(vT1)}, {v(vL2)}")
    a(f"v_lshlrev_b32 {v(vT1)}, 4, {v(vT1)}")
    if wq:
        a(f"v_lshl_add_u32 {v(vWD)}, {v(vT0)}, 13, {v(vT1)}")
        for j in range(1, 4):
            a(f"v_add_u32 {v(vWD+j)}, {j*(32768-1024)}, {v(vWD)}")
    if kv:
        a(f"v_lshl_add_u32 {v(vVD)}, {v(vT0)}, 8, {v(vT1)}")
        a(f"v_xor_b32 {v(vT1)}, {v(vL1)}, {v(vL2)}")
        a(f"v_lshlrev_b32 {v(vT1)}, 4, {v(vT1)}")
        a(f"v_lshl_add_u32 {v(vKD)}, {v(vT0)}, 8, {v(vT1)}")
        for j in range(1, 4):
            a(f"v_xor_b32 {v(vKD+j)}, {j<<6}, {v(vKD)}")

def addr_x(a):
    a(f"v_and_b32 {v(vT0)}, 31, {v(vL0)}")
    a(f"s_lshl_b32 {s(sTMP)}, {s(sW4)}, 5")
    a(f"v_add_u32 {v(vT0)}, {s(sTMP)}, {v(vT0)}")
    a(f"v_mul_u32_u24 {v(vT0)}, 1280, {v(vT0)}")
    a(f"v_lshrrev_b32 {v(vT1)}, 5, {v(vL0)}")
    a(f"v_lshl_add_u32 {v(vXO)}, {v(vT1)}, 4, {v(vT0)}")

def addr_tr(a, base, qproj):
    a(f"v_lshrrev_b32 {v(vT0)}, 5, {v(vL0)}")
    a(f"v_bfe_u32 {v(vT1)}, {v(vL0)}, 2, 2")
    a(f"v_lshl_add_u32 {v(vT0)}, {v(vT0)}, {3 if qproj else 2}, {v(vT1)}")
    a(f"v_lshlrev_b32 {v(vT0)}, 8, {v(vT0)}")
    a(f"v_lshl_add_u32 {v(vT0)}, {v(vT1)}, 6, {v(vT0)}")
    a(f"v_and_b32 {v(vT1)}, 1, {v(vL1)}")
    a(f"v_lshl_add_u32 {v(vT0)}, {v(vT1)}, 5, {v(vT0)}")
    a(f"v_and_b32 {v(vT1)}, 1, {v(vL0)}")
    a(f"v_lshl_add_u32 {v(vT0)}, {v(vT1)}, {4 if qproj else 3}, {v(vT0)}")
    a(f"v_bfe_u32 {v(vT1)}, {v(vL0)}, 1, 1")
    a(f"v_lshl_add_u32 {v(vT0)}, {v(vT1)}, {3 if qproj else 4}, {v(vT0)}")
    a(f"v_add_u32 {v(vAV)}, {base}, {v(vT0)}")
    for db in range(1, 4):
        a(f"v_xor_b32 {v(vAV+db)}, {db<<6}, {v(vAV)}")

def addr_k(a, base):
    a(f"v_lshrrev_b32 {v(vT0)}, 5, {v(vL0)}")
    a(f"v_xor_b32 {v(vT0)}, {v(vT0)}, {v(vL2)}")
    a(f"v_lshlrev_b32 {v(vT0)}, 4, {v(vT0)}")
    a(f"v_and_b32 {v(vT1)}, 31, {v(vL0)}")
    a(f"v_lshl_add_u32 {v(vT0)}, {v(vT1)}, 8, {v(vT0)}")
    a(f"v_add_u32 {v(vAK)}, {base}, {v(vT0)}")
    for k in range(1, 8):
        a(f"v_xor_b32 {v(vAK+k)}, {k<<5}, {v(vAK)}")

def qproj_slab(a, xreg, afr, nfr, first):
    seq = [(ks, db) for ks in range(4) for db in range(4)]
    def rd(n):
        ks, db = seq[n]; r = afr[n % nfr]
        a(f"ds_read_b64_tr_b16 {v(r,2)}, {v(vAV+db)} offset:{ks*4096}")
        a(f"ds_read_b64_tr_b16 {v(r+2,2)}, {v(vAV+db)} offset:{ks*4096+1024}")
    ahead = min(nfr, 6)
    for n in range(ahead): rd(n)
    for n, (ks, db) in enumerate(seq):
        c = "0" if (first and ks == 0) else v(vO+16*db, 16)
        a(f"v_mfma_f32_32x32x16_bf16 {v(vO+16*db,16)}, {v(afr[n % nfr],4)}, {v(xreg+4*ks,4)}, {c}")
        if n + ahead < 16: rd(n + ahead)

def move_tr(a, delta):
    for db in range(4):
        a(f"v_add_u32 {v(vAV+db)}, {delta & 0xffffffff:#x}, {v(vAV+db)}")

def q_convert(a):
    a(f"s_mov_b32 {s(sQS)}, {QSCALE:#x}")
    for r in range(0, 64, 2):
        a(f"v_mul_f32 {v(vO+r)}, {s(sQS)}, {v(vO+r)}")
        a(f"v_mul_f32 {v(vO+r+1)}, {s(sQS)}, {v(vO+r+1)}")
        a(f"v_cvt_pk_bf16_f32 {v(vQ+r//2)}, {v(vO+r)}, {v(vO+r+1)}")

def att_init(a, slot):
    addr_tr(a, slot*SLOT, False)
    addr_k(a, slot*SLOT)
    for r in range(64): a(f"v_mov_b32 {v(vO+r)}, 0")
    for r in range(16): a(f"v_mov_b32 {v(vNM+r)}, 0")
    a(f"v_mov_b32 {v(vLS)}, 0")
    a(f"s_mov_b32 {s(sSLOT)}, {slot}")
    a(f"s_mov_b32 {s(sT)}, 0")
    a(f"s_mov_b32 {s(sTHR)}, 0xff800000")
    a(f"s_mov_b32 {s(sCLAMP)}, 0xff7fffff")

def rare_path(a, kb):
    a.label(f"L_rare{kb}")
    a("s_waitcnt lgkmcnt(0)")
    a("s_nop 15")
    a(f"v_mov_b32 {v(vT1)}, {v(vT0)}")
    a(f"v_permlane32_swap_b32 {v(vT0)}, {v(vT1)}")
    a(f"v_max_f32 {v(vT0)}, {v(vT0)}, {v(vT1)}")
    a(f"v_ceil_f32 {v(vT0)}, {v(vT0)}")
    a(f"v_max_f32 {v(vT0)}, {s(sCLAMP)}, {v(vT0)}")
    a(f"v_max_f32 {v(vT1)}, 0, {v(vT0)}")
    a(f"v_min_f32 {v(vT1)}, 0x43800000, {v(vT1)}")
    a(f"v_cvt_i32_f32 {v(vT1)}, {v(vT1)}")
    a(f"v_sub_u32 {v(vT1)}, 0, {v(vT1)}")
    a(f"v_ldexp_f32 {v(vT1)}, 1.0, {v(vT1)}")
    for r in range(16):
        if kb == 0: a(f"v_sub_f32 {v(vS0+r)}, {v(vS0+r)}, {v(vT0)}")
        a(f"v_sub_f32 {v(vS1+r)}, {v(vS1+r)}, {v(vT0)}")
        a(f"v_sub_f32 {v(vNM+r)}, {v(vNM+r)}, {v(vT0)}")
    for r in range(64): a(f"v_mul_f32 {v(vO+r)}, {v(vO+r)}, {v(vT1)}")
    a(f"v_mul_f32 {v(vLS)}, {v(vLS)}, {v(vT1)}")
    if kb == 1:
        for r in range(8):
            a(f"v_lshlrev_b32 {v(vT0)}, 16, {v(vP0+r)}")
            a(f"v_and_b32 {v(vT2)}, 0xffff0000, {v(vP0+r)}")
            a(f"v_mul_f32 {v(vT0)}, {v(vT0)}, {v(vT1)}")
            a(f"v_mul_f32 {v(vT2)}, {v(vT2)}, {v(vT1)}")
            a(f"v_cvt_pk_bf16_f32 {v(vP0+r)}, {v(vT0)}, {v(vT2)}")
    a(f"s_mov_b32 {s(sTHR)}, 0x41000000")
    a(f"s_mov_b32 {s(sCLAMP)}, 0")
    a("s_nop 1")
    a(f"s_branch L_back{kb}")

def att_loop(a, cfg):
    a.label("L_att")
    a("s_barrier")
    S = (vS0, vS1); P = (vP0, vP1)
    def KR(kb, k): return f"ds_read_b128 {v(vKF+4*k,4)}, {v(vAK+k)} offset:{kb*8192}"
    def QK(kb, k): return f"v_mfma_f32_32x32x16_bf16 {v(S[kb],16)}, {v(vKF+4*k,4)}, {v(vQ+4*k,4)}, {v(vNM if k == 0 else S[kb],16)}"
    pv = [(kb, u, db) for kb in range(2) for u in range(2) for db in range(4)]
    def VR(n):
        kb, u, db = pv[n]; r = vVF + 4*(n % 8); o = 16384 + kb*8192 + u*4096
        return [f"ds_read_b64_tr_b16 {v(r,2)}, {v(vAV+db)} offset:{o}", f"ds_read_b64_tr_b16 {v(r+2,2)}, {v(vAV+db)} offset:{o+2048}"]
    def PV(n):
        kb, u, db = pv[n]
        return f"v_mfma_f32_32x32x16_bf16 {v(vO+16*db,16)}, {v(vVF+4*(n%8),4)}, {v(P[kb]+4*u,4)}, {v(vO+16*db,16)}"
    for k in range(8): a(KR(0, k))
    fill = []; needf = {}
    for k in range(8): fill.append((KR(1, k), 24, k + 1))
    for n in range(4):
        for t in VR(n): fill.append((t, 4, 8))
    def check(kb):
        def f():
            a(f"v_cmp_lt_f32 vcc, {s(sTHR)}, {v(vT0)}")
            a(f"s_cbranch_vccnz L_rare{kb}")
            a.label(f"L_back{kb}", soft=True)
        return f
    vr_extra = {}
    def SM(kb, nb):
        x = S[kb]
        fill.append((f"v_max3_f32 {v(vT0)}, {v(x)}, {v(x+1)}, {v(x+2)}", 4, nb))
        for r in range(3, 15, 2): fill.append((f"v_max3_f32 {v(vT0)}, {v(vT0)}, {v(x+r)}, {v(x+r+1)}", 4, nb))
        fill.append((f"v_max_f32 {v(vT0)}, {v(vT0)}, {v(x+15)}", 4, nb))
        fill.append((check(kb), 8, nb))
        for r in range(0, 16, 2):
            fill.append((f"v_exp_f32 {v(x+r)}, {v(x+r)}", 8, nb))
            fill.append((f"v_exp_f32 {v(x+r+1)}, {v(x+r+1)}", 8, nb))
            if r >= 2:
                fill.append((f"v_add_f32 {v(vLS)}, {v(vLS)}, {v(x+r-2)}", 4, nb))
                fill.append((f"v_add_f32 {v(vLS)}, {v(vLS)}, {v(x+r-1)}", 4, nb))
                fill.append((f"v_cvt_pk_bf16_f32 {v(P[kb]+r//2-1)}, {v(x+r-2)}, {v(x+r-1)}", 4, nb))
                if r == 8: needf[(kb, 0)] = len(fill)
                if kb == 0 and r <= 8:
                    for t in VR(3 + r//2): fill.append((t, 4, nb))
        fill.append((f"v_add_f32 {v(vLS)}, {v(vLS)}, {v(x+14)}", 4, nb))
        fill.append((f"v_add_f32 {v(vLS)}, {v(vLS)}, {v(x+15)}", 4, nb))
        fill.append((f"v_cvt_pk_bf16_f32 {v(P[kb]+7)}, {v(x+14)}, {v(x+15)}", 4, nb))
        needf[(kb, 1)] = len(fill)
    SM(0, 10)
    SM(1, 18)
    adv = [f"s_mov_b32 {s(sDELTA)}, {SLOT}", f"s_add_u32 {s(sSLOT)}, {s(sSLOT)}, 1", f"s_cmp_eq_u32 {s(sSLOT)}, 3",
           f"s_cselect_b32 {s(sDELTA)}, {(-2*SLOT) & 0xffffffff:#x}, {s(sDELTA)}", f"s_cselect_b32 {s(sSLOT)}, 0, {s(sSLOT)}"]
    for t in adv: fill.append((t, 2, 26))
    for k in range(8): fill.append((f"v_add_u32 {v(vAK+k)}, {s(sDELTA)}, {v(vAK+k)}", 4, 26))
    for k in range(4): fill.append((f"v_add_u32 {v(vAV+k)}, {s(sDELTA)}, {v(vAV+k)}", 4, 28))
    mf = [(QK(0, k), 0) for k in range(8)] + [(QK(1, k), k + 1) for k in range(8)]
    for n in range(16):
        kb, u, db = pv[n]
        def mk(n=n):
            def f():
                a(PV(n))
                if n < 8:
                    for t in VR(n + 8): a(t)
            return f
        mf.append((mk(), needf[(kb, u)]))
    weave(a, mf, fill, cfg.get("budget", 24))
    a.wait_lgkm0()
    a("s_waitcnt vmcnt(0)")
    a(f"s_add_u32 {s(sT)}, {s(sT)}, 1")
    a(f"s_cmp_lt_u32 {s(sT)}, 16")
    a("s_cbranch_scc1 L_att")

def finalize(a, cfg):
    fl = cfg.get("ostore", " sc1")
    a(f"v_mov_b32 {v(vT1)}, {v(vLS)}")
    a(f"v_permlane32_swap_b32 {v(vLS)}, {v(vT1)}")
    a(f"v_add_f32 {v(vT0)}, {v(vLS)}, {v(vT1)}")
    a(f"v_rcp_f32 {v(vT0)}, {v(vT0)}")
    a(f"s_lshl_b32 {s(sOST)}, {s(sB)}, 5")
    a(f"s_add_u32 {s(sOST)}, {s(sOST)}, {s(sMYH)}")
    a(f"s_lshl_b32 {s(sOST)}, {s(sOST)}, 15")
    for db in range(4):
        o = vO + 16*db
        for e in range(2):
            d = vS0 + 8*db + 4*e
            for i, r in enumerate((4*e, 4*e+2, 8+4*e, 8+4*e+2)):
                a(f"v_mul_f32 {v(o+r)}, {v(o+r)}, {v(vT0)}")
                a(f"v_mul_f32 {v(o+r+1)}, {v(o+r+1)}, {v(vT0)}")
                a(f"v_cvt_pk_bf16_f32 {v(d+i)}, {v(o+r)}, {v(o+r+1)}")
            a(f"buffer_store_dwordx4 {v(d,4)}, {v(vOS)}, {s(sO,4)}, {s(sOST)} offen offset:{e*512}{fl}", "ost")
        if db < 3: a(f"s_add_u32 {s(sOST)}, {s(sOST)}, 8192")

def addr_ostore(a):
    a(f"v_and_b32 {v(vT0)}, 1, {v(vL1)}")
    a(f"s_lshl_b32 {s(sTMP)}, {s(sW4)}, 1")
    a(f"v_add_u32 {v(vT0)}, {s(sTMP)}, {v(vT0)}")
    a(f"v_lshlrev_b32 {v(vT0)}, 10, {v(vT0)}")
    a(f"v_lshl_add_u32 {v(vT0)}, {v(vL2)}, 4, {v(vT0)}")
    a(f"v_lshrrev_b32 {v(vT1)}, 5, {v(vL0)}")
    a(f"v_lshl_add_u32 {v(vOS)}, {v(vT1)}, 8, {v(vT0)}")

def dump_stamps(a, cfg, n, off):
    if not cfg.get("stamps"): return
    a(f"s_lshl_b32 {s(sTMP)}, s2, 7")
    a(f"s_add_u32 {s(sTMP)}, {s(sTMP)}, {0x2000000 + off}")
    a(f"v_mov_b32 {v(vT1)}, 0")
    for k in range(n):
        a(f"v_mov_b32 {v(vT0)}, {s(sTS+2*k)}")
        a(f"buffer_store_dword {v(vT0)}, {v(vT1)}, {s(sO,4)}, {s(sTMP)} offen offset:{4*k}")
    a("s_waitcnt vmcnt(0)")

def kernel1(a, cfg):
    header(a, K1)
    a("s_cmp_ge_u32 s2, 256"); a("s_cbranch_scc1 L_end1")
    a(f"s_load_dwordx16 {s(sPTR,16)}, s[0:1], 0")
    a(f"v_lshrrev_b32 {v(vT0)}, 6, v0")
    lane_fields(a)
    a(f"v_readfirstlane_b32 {s(sWAVE)}, {v(vT0)}")
    a(f"s_and_b32 {s(sTMP)}, s2, 7"); a(f"s_lshr_b32 {s(sTMP2)}, s2, 3")
    if cfg.get("map", 0) == 0:
        a(f"s_and_b32 {s(sB)}, {s(sTMP)}, 1"); a(f"s_lshl_b32 {s(sB)}, {s(sB)}, 3")
        a(f"s_lshr_b32 {s(sHB)}, {s(sTMP2)}, 2"); a(f"s_add_u32 {s(sB)}, {s(sB)}, {s(sHB)}")
        a(f"s_lshr_b32 {s(sHA)}, {s(sTMP)}, 1"); a(f"s_lshl_b32 {s(sHA)}, {s(sHA)}, 3")
        a(f"s_and_b32 {s(sHB)}, {s(sTMP2)}, 3"); a(f"s_add_u32 {s(sHA)}, {s(sHA)}, {s(sHB)}")
    else:
        a(f"s_lshl_b32 {s(sB)}, {s(sTMP)}, 1"); a(f"s_lshr_b32 {s(sHB)}, {s(sTMP2)}, 4"); a(f"s_add_u32 {s(sB)}, {s(sB)}, {s(sHB)}")
        a(f"s_bfe_u32 {s(sHA)}, {s(sTMP2)}, 0x20002"); a(f"s_lshl_b32 {s(sHA)}, {s(sHA)}, 3")
        a(f"s_and_b32 {s(sHB)}, {s(sTMP2)}, 3"); a(f"s_add_u32 {s(sHA)}, {s(sHA)}, {s(sHB)}")
    a(f"s_add_u32 {s(sHB)}, {s(sHA)}, 4")
    rot = cfg.get("rot", 0)
    if rot == 0: a(f"s_mov_b32 {s(sROT)}, 0")
    elif rot == 1: a(f"s_and_b32 {s(sROT)}, {s(sTMP2)}, 15")
    elif rot == 2: a(f"s_and_b32 {s(sROT)}, s2, 15")
    a(f"s_and_b32 {s(sW4)}, {s(sWAVE)}, 3")
    a(f"s_lshl_b32 {s(sM0W)}, {s(sW4)}, 12")
    a(f"s_mul_i32 {s(sXB)}, {s(sB)}, 163840")
    a(f"s_lshl_b32 {s(sKVA)}, {s(sB)}, 5"); a(f"s_add_u32 {s(sKVA)}, {s(sKVA)}, {s(sHA)}"); a(f"s_lshl_b32 {s(sKVA)}, {s(sKVA)}, 18")
    a(f"s_add_u32 {s(sKVB)}, {s(sKVA)}, {4 << 18}")
    addr_x(a)
    addr_dma(a)
    a("s_waitcnt lgkmcnt(0)")
    srd(a, sX, sPTR + 0, 2621440); srd(a, sWQ, sPTR + 6, 5242880)
    srd(a, sK, sPTR + 2, 134217728); srd(a, sV, sPTR + 4, 134217728); srd(a, sO, sPTR + 14, 0x4000000)
    stamp(a, cfg, 0)
    a(f"s_cmp_ge_u32 {s(sWAVE)}, 4"); a("s_cbranch_scc1 L_roleB")

    slabs = [2*SLOT, 2*SLOT + 16384] + [WBASE + 16384*j for j in range(4)] + [WBASE + 16384*j for j in range(4)]
    xr = [vS0 + 16*j for j in range(6)]
    for j in range(6): load_x(a, j, xr[j], f"x{j}")
    a(f"s_mov_b32 {s(sMYH)}, {s(sHA)}")
    addr_tr(a, slabs[0], True)
    addr_ostore(a)
    afr = [vVF + 4*j for j in range(8)]
    for st in range(10):
        a.wait_vm(f"x{st}", f"w{st}")
        a("s_barrier")
        if 3 <= st <= 6:
            dma_wq(a, sHA, st + 3, slabs[st + 3], f"w{st+3}")
            load_x(a, st + 3, xr[(st + 3) % 6], f"x{st+3}")
        qproj_slab(a, xr[st % 6], afr, 8, st == 0)
        if st < 9: move_tr(a, slabs[st + 1] - slabs[st])
    q_convert(a)
    att_init(a, 0)
    stamp(a, cfg, 1)
    a("s_branch L_att")

    a.label("L_roleB")
    a.vm, a.vmdst, a.lgkm = [], [], []
    for j in range(6): dma_wq(a, sHA, j, slabs[j], f"w{j}")
    dma_kv(a, cfg, sKVA, 0, 0, "t0"); dma_kv(a, cfg, sKVA, 1, 1, "t1")
    a(f"s_mov_b32 {s(sMYH)}, {s(sHB)}")
    addr_tr(a, WBASE, True)
    addr_ostore(a)
    for st in range(10):
        a.wait_vm(f"w{st}")
        a("s_barrier")
        if st == 2: dma_kv(a, cfg, sKVA, 2, 2, "t2")
    xr = [vS0 + 16*j for j in range(2)]
    afr = [vKF + 4*j for j in range(16)]
    for t in range(16):
        a.wait_vm(f"t{t}", f"bw{t-2}", f"bx{t-2}")
        a("s_barrier")
        if 1 <= t <= 10:
            j = t - 1
            dma_wq(a, sHB, j, WBASE + 16384*(j % 4), f"bw{j}")
            load_x(a, j, xr[j % 2], f"bx{j}")
        if t >= 1:
            n = t + 2
            dma_kv(a, cfg, sKVA if n < 16 else sKVB, n % 16, n % 3, f"t{n}")
        if 2 <= t <= 11:
            j = t - 2
            qproj_slab(a, xr[j % 2], afr, 16, j == 0)
            if j < 9: move_tr(a, 16384*((j + 1) % 4 - j % 4))
        if t == 12: q_convert(a)
        if t == 13: att_init(a, 1)
    stamp(a, cfg, 1)
    a.wait_vm("t16")
    a.vm, a.vmdst = [], []

    att_loop(a, cfg)
    stamp(a, cfg, 2)
    a(f"s_cmp_ge_u32 {s(sWAVE)}, 4"); a("s_cbranch_scc1 L_fin")
    a("s_barrier")
    dma_kv(a, cfg, sKVB, 2, (16 + 2) % 3, "t2")
    a.label("L_fin", soft=True)
    a("s_nop 7")
    finalize(a, cfg)
    a(f"s_cmp_ge_u32 {s(sWAVE)}, 4"); a("s_cbranch_scc1 L_tailB")

    for t in range(1, 16):
        a.wait_vm(f"t{t}")
        a("s_barrier")
        if t + 2 < 16: dma_kv(a, cfg, sKVB, t + 2, (16 + t + 2) % 3, f"t{t+2}")
    a.label("L_tailB")
    a("s_waitcnt vmcnt(0)")
    stamp(a, cfg, 3)
    if cfg.get("stamps"):
        a(f"s_cmp_eq_u32 {s(sWAVE)}, 0"); a("s_cbranch_scc0 L_st4")
        dump_stamps(a, cfg, 4, 0)
        a.label("L_st4")
        a(f"s_cmp_eq_u32 {s(sWAVE)}, 4"); a("s_cbranch_scc0 L_end1")
        dump_stamps(a, cfg, 4, 32)
    a.label("L_end1")
    a("s_endpgm")
    rare_path(a, 0); rare_path(a, 1)

oACC, oA, oOF = 16, 96, 116
oWD, oOL, oTR = 1, 6, 7
sNG, sWS, sOS, sLB = 42, 43, 44, 45

def oproj_addr(a):
    for p in range(5):
        a(f"v_add_u32 {v(vT0)}, {64*p}, {v(vL0)}")
        a(f"v_mul_u32_u24 {v(vT1)}, 6554, {v(vT0)}")
        a(f"v_lshrrev_b32 {v(vT1)}, 16, {v(vT1)}")
        a(f"v_mul_u32_u24 {v(vT2)}, 1120, {v(vT1)}")
        a(f"v_lshl_add_u32 {v(oWD+p)}, {v(vT0)}, 4, {v(vT2)}")
        if 0 < p < 4: a(f"v_subrev_u32 {v(oWD+p)}, {1024*p}, {v(oWD+p)}")
    a(f"v_lshlrev_b32 {v(oOL)}, 4, {v(vL0)}")
    a(f"v_lshrrev_b32 {v(vT0)}, 2, {v(vL0)}")
    a(f"v_mul_u32_u24 {v(vT0)}, 160, {v(vT0)}")
    a(f"v_and_b32 {v(vT1)}, 3, {v(vL0)}")
    a(f"v_lshl_add_u32 {v(vT0)}, {v(vT1)}, 3, {v(vT0)}")
    a(f"v_add_u32 {v(oTR)}, {s(sLB)}, {v(vT0)}")

def oproj_dma(a, buf, tag):
    a(f"s_add_u32 m0, {s(sLB)}, {buf*5120}")
    for p in range(4):
        a(f"buffer_load_dwordx4 {v(oWD+p)}, {s(sWO,4)}, {s(sWS)} offen offset:{p*1024} lds", tag)
    a(f"s_add_u32 m0, {s(sLB)}, {buf*5120+4096}")
    a(f"buffer_load_dwordx4 {v(oWD+4)}, {s(sWO,4)}, {s(sWS)} offen lds", tag)
    a(f"s_add_u32 {s(sWS)}, {s(sWS)}, 40960")

def oproj_ld(a, cfg, st, tag):
    fl = cfg.get("oload", " sc1")
    for i in range(4):
        a(f"buffer_load_dwordx4 {v(oOF+16*st+4*i,4)}, {v(oOL)}, {s(sO,4)}, {s(sOS)} offen offset:{i*1024}{fl}", tag)
    a(f"s_add_u32 {s(sOS)}, {s(sOS)}, 8192")

def oproj_rd(a, buf, nt):
    a(f"ds_read_b64_tr_b16 {v(oA+4*nt,2)}, {v(oTR)} offset:{buf*5120+32*nt}")
    a(f"ds_read_b64_tr_b16 {v(oA+4*nt+2,2)}, {v(oTR)} offset:{buf*5120+32*nt+2560}")

def kernel2(a, cfg):
    a.vm, a.vmdst, a.lgkm, a.hist = [], [], [], []
    header(a, K2)
    a("s_cmp_ge_u32 s2, 256"); a("s_cbranch_scc1 L_end2")
    a(f"s_load_dwordx16 {s(sPTR,16)}, s[0:1], 0")
    a(f"v_lshrrev_b32 {v(vT0)}, 6, v0")
    lane_fields(a)
    a(f"v_readfirstlane_b32 {s(sWAVE)}, {v(vT0)}")
    a(f"s_and_b32 {s(sTMP)}, s2, 7"); a(f"s_lshr_b32 {s(sTMP2)}, s2, 3")
    a(f"s_and_b32 {s(sB)}, {s(sTMP)}, 1"); a(f"s_lshl_b32 {s(sB)}, {s(sB)}, 3")
    a(f"s_and_b32 {s(sTMP)}, {s(sTMP)}, 6"); a(f"s_add_u32 {s(sB)}, {s(sB)}, {s(sTMP)}")
    a(f"s_lshr_b32 {s(sTMP)}, {s(sTMP2)}, 4"); a(f"s_add_u32 {s(sB)}, {s(sB)}, {s(sTMP)}")
    a(f"s_bfe_u32 {s(sHA)}, {s(sTMP2)}, 0x10003")
    a(f"s_and_b32 {s(sHB)}, {s(sTMP2)}, 7")
    a(f"s_lshl_b32 {s(sNG)}, {s(sWAVE)}, 5")
    a(f"s_mul_i32 {s(sWS)}, {s(sNG)}, 40960"); a(f"s_mul_i32 {s(sTMP)}, {s(sHB)}, 160"); a(f"s_add_u32 {s(sWS)}, {s(sWS)}, {s(sTMP)}")
    a(f"s_lshl_b32 {s(sOS)}, {s(sB)}, 7"); a(f"s_add_u32 {s(sOS)}, {s(sOS)}, {s(sNG)}"); a(f"s_lshl_b32 {s(sOS)}, {s(sOS)}, 13")
    a(f"s_lshl_b32 {s(sTMP)}, {s(sHA)}, 12"); a(f"s_add_u32 {s(sOS)}, {s(sOS)}, {s(sTMP)}")
    a(f"s_mul_i32 {s(sLB)}, {s(sWAVE)}, 40960")
    oproj_addr(a)
    a("s_waitcnt lgkmcnt(0)")
    srd(a, sO, sPTR + 14, 0x4000000); srd(a, sWO, sPTR + 8, 5242880); srd(a, sOUT, sPTR + 10, 2621440)
    stamp(a, cfg, 0)
    N, D = 32, 7
    for n in range(D - 1):
        oproj_dma(a, n, f"w{n}"); oproj_ld(a, cfg, n, f"o{n}")
    a.wait_vm("w0")
    for nt in range(5): oproj_rd(a, 0, nt)
    for n in range(N):
        if n + D - 1 < N:
            m = n + D - 1
            oproj_dma(a, m % D, f"w{m}"); oproj_ld(a, cfg, m % D, f"o{m}")
        a.wait_vm(f"o{n}", f"w{n+1}")
        for nt in range(5):
            for i in range(4):
                acc = v(oACC + 20*i + 4*nt, 4)
                a(f"v_mfma_f32_16x16x32_bf16 {acc}, {v(oA+4*nt,4)}, {v(oOF+16*(n%D)+4*i,4)}, {'0' if n == 0 else acc}")
            if n + 1 < N: oproj_rd(a, (n + 1) % D, nt)
    oproj_reduce(a)
    stamp(a, cfg, 1)
    if cfg.get("stamps"):
        a(f"s_cmp_eq_u32 {s(sWAVE)}, 0"); a("s_cbranch_scc0 L_end2")
        dump_stamps(a, cfg, 2, 64)
    a.label("L_end2")
    a("s_endpgm")

def oproj_reduce(a):
    a(f"v_add_u32 {v(vT0)}, {s(sLB)}, {v(oOL)}")
    for i in range(4):
        for nt in range(5):
            a(f"ds_write_b128 {v(vT0)}, {v(oACC+20*i+4*nt,4)} offset:{(5*i+nt)*1024}")
    a(f"s_mul_i32 {s(sTMP)}, {s(sWAVE)}, 5120")
    a(f"v_add_u32 {v(vT1)}, {s(sTMP)}, {v(oOL)}")
    a(f"v_add_u32 {v(vT2)}, {2*40960}, {v(vT1)}")
    a(f"s_lshl_b32 {s(sTMP)}, {s(sB)}, 7"); a(f"s_lshl_b32 {s(sTMP2)}, {s(sHA)}, 6"); a(f"s_add_u32 {s(sTMP)}, {s(sTMP)}, {s(sTMP2)}")
    a(f"s_lshl_b32 {s(sTMP2)}, {s(sWAVE)}, 4"); a(f"s_add_u32 {s(sTMP)}, {s(sTMP)}, {s(sTMP2)}")
    a(f"s_mul_i32 {s(sTMP)}, {s(sTMP)}, 1280"); a(f"s_mul_i32 {s(sTMP2)}, {s(sHB)}, 160"); a(f"s_add_u32 {s(sTMP)}, {s(sTMP)}, {s(sTMP2)}")
    a(f"v_mul_u32_u24 {v(vL3)}, 1280, {v(vL2)}")
    a(f"v_lshl_add_u32 {v(vL3)}, {v(vL1)}, 3, {v(vL3)}")
    a("s_waitcnt lgkmcnt(0)")
    a("s_barrier")
    for w in range(4):
        for nt in range(5):
            a(f"ds_read_b128 {v(oOF+20*w+4*nt,4)}, {v(vT1 if w < 2 else vT2)} offset:{(w%2)*40960+nt*1024}")
    for nt in range(5):
        r = oOF + 4*nt
        for k in range(4):
            a(f"v_add_f32 {v(r+k)}, {v(r+k)}, {v(r+20+k)}")
            a(f"v_add_f32 {v(r+40+k)}, {v(r+40+k)}, {v(r+60+k)}")
        for k in range(4):
            a(f"v_add_f32 {v(r+k)}, {v(r+k)}, {v(r+40+k)}")
        a(f"v_cvt_pk_bf16_f32 {v(oA+2*nt)}, {v(r)}, {v(r+1)}")
        a(f"v_cvt_pk_bf16_f32 {v(oA+2*nt+1)}, {v(r+2)}, {v(r+3)}")
        a(f"buffer_store_dwordx2 {v(oA+2*nt,2)}, {v(vL3)}, {s(sOUT,4)}, {s(sTMP)} offen offset:{32*nt}", "out")
    a("s_waitcnt vmcnt(0)")

def descriptor(name):
    return f""".p2align 6
.amdhsa_kernel {name}
  .amdhsa_next_free_vgpr 256
  .amdhsa_next_free_sgpr 96
  .amdhsa_accum_offset 256
  .amdhsa_group_segment_fixed_size 0
  .amdhsa_kernarg_size 64
  .amdhsa_user_sgpr_count 2
  .amdhsa_user_sgpr_kernarg_segment_ptr 1
  .amdhsa_system_sgpr_workgroup_id_x 1
  .amdhsa_float_denorm_mode_32 3
.end_amdhsa_kernel
"""

def gen(cfg):
    a = Asm()
    kernel1(a, cfg)
    kernel2(a, cfg)
    body = a.text()
    probs = check_cfg(body)
    for p in probs: print("HAZARD", p, file=sys.stderr)
    assert not probs
    head = (f"; @launch kernel={K1} grid=(256,1,1) block=(512,1,1) lds=163840\n"
            f"; @launch kernel={K2} grid=(256,1,1) block=(256,1,1) lds=163840\n"
            '.amdgcn_target "amdgcn-amd-amdhsa--gfx950"\n.text\n')
    return head + body + '.section .rodata,"a"\n' + descriptor(K1) + descriptor(K2)

if __name__ == "__main__":
    out = sys.argv[1]
    cfg = eval(sys.argv[2]) if len(sys.argv) > 2 else {}
    open(out, "w").write(gen(cfg))
```

```python
import sys, struct, math
from asmlib import *

K1 = "standalone__gqa_block_cached__near_ridge_kernel"
def f2u(x): return struct.unpack("<I", struct.pack("<f", x))[0]
QSCALE = f2u(math.log2(math.e) / math.sqrt(128.0))
MF = "v_mfma_f32_16x16x32_bf16"
CF = {}

sX, sWQ, sK, sV, sO, sWO, sOUT, sDBG = 4, 8, 12, 16, 20, 24, 28, 32
sWAVE, sW4, sB, sHA, sGRP, sROT = 36, 37, 38, 39, 40, 41
sXB, sKVA, sKVB, sM0W, sT, sSLOT, sDELTA, sTHR, sCLAMP, sTMP, sTMP2, sOST, sMYH, sQS = range(42, 56)
sSX, sSW, sW8, sFP, sOB, sRH, sNB, sKR = range(56, 64)
sPTR = 64
sTS = 80
sNL, sOBASE, sWBASE, sFO, sSIGT, sTMP3, sLW, sSPIN, sEX, sMX, sMW, sMK, sPA, sPB = 82, 83, 84, 85, 86, 87, 88, 89, 90, 92, 93, 94, 95, 96
vKD, vVD, vWD, vXD = 1, 5, 7, 9
vL0, vL1, vL2, vT0, vT1 = 11, 12, 13, 14, 15
vQ, vO, vS, vNM, vL, vP, vKF, vVF = 16, 48, 112, 144, 152, 160, 176, 208
vAK, vAV, vONE = 240, 244, 252
vT2, vXA, vCF = 175, 252, 112
oACC, oG = 16, 96
oOL, oLN, oPL, oPL2, oT, oT2 = 240, 244, 245, 246, 247, 248
SLOT, NS, WBASE = 32768, 4, 131072
WOP, FLG, FST = 0x1000000, 0x1800000, 1280

def srd(a, d, ptr, size):
    a(f"s_mov_b32 {s(d)}, {s(ptr)}"); a(f"s_mov_b32 {s(d+1)}, {s(ptr+1)}")
    a(f"s_mov_b32 {s(d+2)}, {size}"); a(f"s_mov_b32 {s(d+3)}, 0x20000")

def stamp(a, k, clk="s_memrealtime"):
    if CF.get("stamps"):
        a(f"{clk} {s(sTS, 2)}"); a("s_waitcnt lgkmcnt(0)")
        if isinstance(k, int): a(f"v_writelane_b32 v0, {s(sTS)}, {k}")
        else:
            a(f"s_add_u32 m0, {k[0]}, {k[1]}"); a(f"v_writelane_b32 v0, {s(sTS)}, m0")

def kv_off(a, skv, tile):
    a(f"s_add_u32 {s(sTMP)}, {s(sROT)}, {tile}")
    a(f"s_and_b32 {s(sTMP)}, {s(sTMP)}, 15")
    a(f"s_lshl_b32 {s(sTMP)}, {s(sTMP)}, 14")
    a(f"s_add_u32 {s(sTMP)}, {s(sTMP)}, {s(skv)}")

def kv_piece(a, p, tag):
    if p < 4: a(f"buffer_load_dwordx4 {v(vKD+p)}, {s(sK,4)}, {s(sTMP)} offen offset:{p*1024} nt lds", tag)
    else: a(f"buffer_load_dwordx4 {v(vVD+p%2)}, {s(sV,4)}, {s(sTMP)} offen offset:{(p-4)*1024} nt lds", tag)

def dma_kv(a, n, tag):
    kv_off(a, sKVA if n < 16 else sKVB, n % 16)
    for p in range(8):
        if p % 4 == 0: a(f"s_add_u32 m0, {s(sM0W)}, {(n % NS)*SLOT + 4096*p}")
        kv_piece(a, p, tag)

def dma_x(a, buf, tag):
    if CF.get("nox"): return
    a(f"s_lshl_b32 {s(sTMP2)}, {s(sSX)}, 7")
    a(f"s_add_u32 {s(sTMP2)}, {s(sTMP2)}, {s(sXB)}")
    a(f"s_add_u32 m0, {s(sMX)}, {buf*16384}")
    for j in range(2):
        a(f"buffer_load_dwordx4 {v(vXD+j)}, {s(sX,4)}, {s(sTMP2)} offen offset:{j*1024} lds", tag)
    a(f"s_add_u32 {s(sSX)}, {s(sSX)}, 1")
    a(f"s_cmp_eq_u32 {s(sSX)}, 10")
    a(f"s_cselect_b32 {s(sSX)}, 0, {s(sSX)}")

def dma_w(a, h, tag):
    if CF.get("now"): return
    a(f"s_lshl_b32 {s(sTMP2)}, {s(sSW)}, 18")
    a(f"s_add_u32 {s(sTMP2)}, {s(sTMP2)}, {s(sQS)}")
    a(f"s_add_u32 m0, {s(sMW)}, {(h & 1)*8192 + ((h >> 1) & 1)*SLOT}")
    for j in range(2):
        a(f"buffer_load_dwordx4 {v(vWD+j)}, {s(sWQ,4)}, {s(sTMP2)} offen offset:{j*1024} lds", tag)
    a(f"s_add_u32 {s(sSW)}, {s(sSW)}, 1")
    a(f"s_cmp_eq_u32 {s(sSW)}, 20")
    a(f"s_cselect_b32 {s(sSW)}, 0, {s(sSW)}")

def addr_stage(a):
    a(f"s_lshl_b32 {s(sTMP)}, {s(sW4)}, 3")
    a(f"v_add_u32 {v(vT0)}, {s(sTMP)}, {v(vL1)}")
    a(f"s_and_b32 {s(sTMP)}, {s(sTMP)}, 8")
    a(f"v_lshl_add_u32 {v(vT1)}, {v(vL1)}, 1, {s(sTMP)}")
    a(f"v_xor_b32 {v(vT1)}, {v(vT1)}, {v(vL2)}")
    a(f"v_lshlrev_b32 {v(vT1)}, 4, {v(vT1)}")
    a(f"v_lshl_add_u32 {v(vWD)}, {v(vT0)}, 13, {v(vT1)}")
    a(f"v_add_u32 {v(vWD+1)}, {32768-1024}, {v(vWD)}")
    a(f"s_lshl_b32 {s(sTMP)}, {s(sWAVE)}, 4")
    a(f"v_lshrrev_b32 {v(vT0)}, 3, {v(vL0)}")
    a(f"v_add_u32 {v(vT0)}, {s(sTMP)}, {v(vT0)}")
    a(f"v_mul_u32_u24 {v(vT0)}, 1280, {v(vT0)}")
    a(f"v_and_b32 {v(vT1)}, 7, {v(vL0)}")
    a(f"v_xor_b32 {v(vT1)}, {v(vT1)}, {v(vL1)}")
    a(f"v_lshl_add_u32 {v(vXD)}, {v(vT1)}, 4, {v(vT0)}")
    a(f"v_xor_b32 {v(vXD+1)}, 64, {v(vXD)}")
    a(f"v_add_u32 {v(vXD+1)}, {10240-1024}, {v(vXD+1)}")

def addr_kv(a):
    a(f"s_lshl_b32 {s(sTMP)}, {s(sW4)}, 4")
    a(f"v_add_u32 {v(vT0)}, {s(sTMP)}, {v(vL1)}")
    a(f"v_lshlrev_b32 {v(vT1)}, 1, {v(vL1)}")
    a(f"v_xor_b32 {v(vT1)}, {v(vT1)}, {v(vL2)}")
    a(f"v_lshlrev_b32 {v(vT1)}, 4, {v(vT1)}")
    a(f"v_lshl_add_u32 {v(vVD)}, {v(vT0)}, 8, {v(vT1)}")
    a(f"v_xor_b32 {v(vVD+1)}, 128, {v(vVD)}")
    a(f"v_xor_b32 {v(vT1)}, {v(vL1)}, {v(vL2)}")
    a(f"v_lshlrev_b32 {v(vT1)}, 4, {v(vT1)}")
    a(f"v_lshl_add_u32 {v(vKD)}, {v(vT0)}, 8, {v(vT1)}")
    for j in range(1, 4):
        a(f"v_xor_b32 {v(vKD+j)}, {j<<6}, {v(vKD)}")

def addr_xread(a):
    a(f"v_lshrrev_b32 {v(vT0)}, 1, {v(vL2)}")
    a(f"v_xor_b32 {v(vT0)}, {v(vT0)}, {v(vL1)}")
    a(f"v_lshlrev_b32 {v(vT0)}, 4, {v(vT0)}")
    a(f"v_lshl_add_u32 {v(vT0)}, {v(vL2)}, 7, {v(vT0)}")
    a(f"s_add_u32 {s(sTMP)}, {s(sM0W)}, {WBASE}")
    a(f"v_add_u32 {v(vXA)}, {s(sTMP)}, {v(vT0)}")
    a(f"v_xor_b32 {v(vXA+1)}, 64, {v(vXA)}")

def addr_tr(a, base, qproj):
    a(f"v_bfe_u32 {v(vT1)}, {v(vL0)}, 2, 2")
    a(f"v_lshl_add_u32 {v(vT0)}, {v(vL1)}, {3 if qproj else 2}, {v(vT1)}")
    a(f"v_lshlrev_b32 {v(vT0)}, 8, {v(vT0)}")
    a(f"v_bfe_u32 {v(vT1)}, {v(vL0)}, 2, 3")
    a(f"v_lshl_add_u32 {v(vT0)}, {v(vT1)}, 5, {v(vT0)}")
    a(f"v_and_b32 {v(vT1)}, 3, {v(vL0)}")
    a(f"v_lshl_add_u32 {v(vT0)}, {v(vT1)}, 3, {v(vT0)}")
    a(f"v_add_u32 {v(vAV)}, {base}, {v(vT0)}")
    for dt in range(1, 8):
        a(f"v_xor_b32 {v(vAV+dt)}, {dt<<5}, {v(vAV)}")

def addr_k(a):
    a(f"v_xor_b32 {v(vT0)}, {v(vL1)}, {v(vL2)}")
    a(f"v_lshlrev_b32 {v(vT0)}, 4, {v(vT0)}")
    a(f"v_lshl_add_u32 {v(vAK)}, {v(vL2)}, 8, {v(vT0)}")
    for k in range(1, 4):
        a(f"v_xor_b32 {v(vAK+k)}, {k<<6}, {v(vAK)}")

def qproj_half(a, h, mid):
    if CF.get("noqm"): return mid()
    wo = (h & 1)*8192 + ((h >> 1) & 1)*SLOT
    base = vKF + 32*(h & 1)
    def rd(dt):
        a(f"ds_read_b64_tr_b16 {v(base+4*dt,2)}, {v(vAV+dt)} offset:{wo}")
        a(f"ds_read_b64_tr_b16 {v(base+4*dt+2,2)}, {v(vAV+dt)} offset:{wo+1024}")
    x = vS + 8*(h & 1)
    for qb in range(2): a(f"ds_read_b128 {v(x+4*qb,4)}, {v(vXA+(h&1))} offset:{((h>>1)&1)*16384 + 2048*qb}")
    for dt in range(6): rd(dt)
    mid()
    for dt in range(8):
        for qb in range(2):
            acc = v(vO+8*dt+4*qb, 4)
            a(f"{MF} {acc}, {v(base+4*dt,4)}, {v(x+4*qb,4)}, {'0' if h == 0 else acc}")
        if dt + 6 < 8: rd(dt + 6)

def q_convert(a):
    a(f"s_mov_b32 {s(sQS)}, {QSCALE:#x}")
    for ks in range(4):
        for qb in range(2):
            q = vQ + 8*ks + 4*qb
            for hb in range(2):
                o = vO + 8*(2*ks + hb) + 4*qb
                for r in range(4): a(f"v_mul_f32 {v(o+r)}, {s(sQS)}, {v(o+r)}")
                a(f"v_cvt_pk_bf16_f32 {v(q+2*hb)}, {v(o)}, {v(o+1)}")
                a(f"v_cvt_pk_bf16_f32 {v(q+2*hb+1)}, {v(o+2)}, {v(o+3)}")
                for r in range(4): a(f"v_mov_b32 {v(o+r)}, 0")
    for op in ("v_permlane32_swap_b32", "v_permlane16_swap_b32"):
        for q in range(vQ, vQ + 32, 4):
            a(f"{op} {v(q)}, {v(q+2)}"); a(f"{op} {v(q+1)}, {v(q+3)}")

def att_init(a):
    addr_tr(a, 0, False)
    addr_k(a)
    for r in range(16): a(f"v_mov_b32 {v(vNM+r)}, 0")
    for r in range(4): a(f"v_mov_b32 {v(vONE+r)}, 0x3f803f80")
    a(f"s_mov_b32 {s(sSLOT)}, 0")
    a(f"s_mov_b32 {s(sT)}, 0")
    a(f"s_mov_b32 {s(sTHR)}, 0xff800000")
    a(f"s_mov_b32 {s(sCLAMP)}, 0xff7fffff")

RARE_KT = [4, 4]
def rare_path(a, u):
    a.label(f"L_rare{u}")
    a("s_waitcnt lgkmcnt(0)")
    a("s_nop 7")
    t2 = vP + 8 if u == 0 else vS
    fr = [vP + 9, vP + 10] if u == 0 else [vS + 1, vS + 2]
    for qb in range(2):
        x = vS + 16*u + 4*qb
        a(f"v_max3_f32 {v(vT0)}, {v(x)}, {v(x+1)}, {v(x+2)}")
        a(f"v_max3_f32 {v(vT0)}, {v(vT0)}, {v(x+3)}, {v(x+8)}")
        a(f"v_max3_f32 {v(vT0)}, {v(vT0)}, {v(x+9)}, {v(x+10)}")
        a(f"v_max_f32 {v(vT0)}, {v(vT0)}, {v(x+11)}")
        for op in ("v_permlane32_swap_b32", "v_permlane16_swap_b32"):
            a(f"v_mov_b32 {v(vT1)}, {v(vT0)}")
            a(f"{op} {v(vT0)}, {v(vT1)}")
            a(f"v_max_f32 {v(vT0)}, {v(vT0)}, {v(vT1)}")
        a(f"v_ceil_f32 {v(vT0)}, {v(vT0)}")
        a(f"v_max_f32 {v(vT0)}, {s(sCLAMP)}, {v(vT0)}")
        a(f"v_max_f32 {v(vT1)}, 0, {v(vT0)}")
        a(f"v_min_f32 {v(vT1)}, 0x43800000, {v(vT1)}")
        a(f"v_cvt_i32_f32 {v(vT1)}, {v(vT1)}")
        a(f"v_sub_u32 {v(vT1)}, 0, {v(vT1)}")
        a(f"v_ldexp_f32 {v(fr[qb])}, 1.0, {v(vT1)}")
        for kt in range(2*u, RARE_KT[u]):
            for r in range(4): a(f"v_sub_f32 {v(vS+8*kt+4*qb+r)}, {v(vS+8*kt+4*qb+r)}, {v(vT0)}")
        for r in range(4): a(f"v_sub_f32 {v(vNM+4*qb+r)}, {v(vNM+4*qb+r)}, {v(vT0)}")
    if u == 0:
        a(f"s_cmp_lg_u32 {s(sCLAMP)}, 0")
        a(f"s_cbranch_scc1 L_rare0_done")
    for qb in range(2):
        f = v(fr[qb])
        for r in range(4): a(f"v_mul_f32 {v(vL+4*qb+r)}, {v(vL+4*qb+r)}, {f}")
        for dt in range(8):
            for r in range(4): a(f"v_mul_f32 {v(vO+8*dt+4*qb+r)}, {v(vO+8*dt+4*qb+r)}, {f}")
        if u == 1:
            for r in range(4):
                p = vP + 4*qb + r
                a(f"v_lshlrev_b32 {v(vT0)}, 16, {v(p)}")
                a(f"v_and_b32 {v(t2)}, 0xffff0000, {v(p)}")
                a(f"v_mul_f32 {v(vT0)}, {v(vT0)}, {f}")
                a(f"v_mul_f32 {v(t2)}, {v(t2)}, {f}")
                a(f"v_cvt_pk_bf16_f32 {v(p)}, {v(vT0)}, {v(t2)}")
    if u == 0: a.label("L_rare0_done", soft=True)
    a(f"s_mov_b32 {s(sTHR)}, 0x41000000")
    a(f"s_mov_b32 {s(sCLAMP)}, 0")
    a(f"s_branch L_back{u}")

def att_loop(a):
    a(f"s_setprio {CF.get('prio', 0)}")
    a.label("L_att")
    a("s_barrier")
    if CF.get("tl"):
        stamp(a, (s(sT), 40)); stamp(a, (s(sT), 24), "s_memtime")
    Sr = lambda kt, qb: vS + 8*kt + 4*qb
    Pr = lambda u, qb: vP + 8*u + 4*qb
    def KR(n): return f"ds_read_b128 {v(vKF+4*(n%8),4)}, {v(vAK+n%4)} offset:{(n//4)*4096}"
    def VR(u, dt):
        r = (vVF if u == 0 else vKF) + 4*dt; o = 16384 + u*8192
        return [f"ds_read_b64_tr_b16 {v(r,2)}, {v(vAV+dt)} offset:{o}", f"ds_read_b64_tr_b16 {v(r+2,2)}, {v(vAV+dt)} offset:{o+4096}"]
    started = set()
    def QK(n, qb):
        kt, ks = n // 4, n % 4
        def f():
            started.add((kt, qb))
            a(f"{MF} {v(Sr(kt,qb),4)}, {v(vKF+4*(n%8),4)}, {v(vQ+8*ks+4*qb,4)}, {v(vNM+4*qb if ks == 0 else Sr(kt,qb),4)}")
        return f
    def PV(u, qb, dt):
        acc = v(vO+8*dt+4*qb, 4)
        return f"{MF} {acc}, {v((vVF if u == 0 else vKF)+4*dt,4)}, {v(Pr(u,qb),4)}, {acc}"
    def LS(u, qb): return f"{MF} {v(vL+4*qb,4)}, {v(vONE,4)}, {v(Pr(u,qb),4)}, {v(vL+4*qb,4)}"
    for n in range(8): a(KR(n))
    fill = []; needf = {}
    for n in range(8):
        fill.append((KR(n + 8), 4, 2*n + 2))
        for t in VR(0, n): fill.append((t, 4, 2*n + 2))
    def check(u):
        def f():
            if u == 0:
                assert len(started) in (6, 8)
                RARE_KT[0] = len(started) // 2
            a(f"v_cmp_lt_f32 vcc, {s(sTHR)}, {v(vT0)}")
            a(f"s_cbranch_vccnz L_rare{u}")
            a.label(f"L_back{u}", soft=True)
        return f
    def mx(u, nb):
        x = vS + 16*u
        fill.append((f"v_max3_f32 {v(vT0)}, {v(x)}, {v(x+1)}, {v(x+2)}", 4, nb))
        for r in range(3, 15, 2): fill.append((f"v_max3_f32 {v(vT0)}, {v(vT0)}, {v(x+r)}, {v(x+r+1)}", 4, nb))
        fill.append((f"v_max_f32 {v(vT0)}, {v(vT0)}, {v(x+15)}", 4, nb))
        fill.append((check(u), 8, nb))
    def ex(u, qb, nb, extra=()):
        extra = list(extra)
        regs = [Sr(2*u, qb) + r for r in range(4)] + [Sr(2*u + 1, qb) + r for r in range(4)]
        for i in range(4):
            fill.append((f"v_exp_f32 {v(regs[2*i])}, {v(regs[2*i])}", 8, nb))
            fill.append((f"v_exp_f32 {v(regs[2*i+1])}, {v(regs[2*i+1])}", 8, nb))
            if i: fill.append((f"v_cvt_pk_bf16_f32 {v(Pr(u,qb)+i-1)}, {v(regs[2*i-2])}, {v(regs[2*i-1])}", 4, nb))
            for t in extra[4*i:4*i+4]: fill.append(t)
        fill.append((f"v_cvt_pk_bf16_f32 {v(Pr(u,qb)+3)}, {v(regs[6])}, {v(regs[7])}", 4, nb))
        needf[(u, qb)] = len(fill)
    v1 = [(t, 4, 32) for dt in range(8) for t in VR(1, dt)]
    mx(0, 19); ex(0, 0, 19); ex(0, 1, 19)
    for t in v1[:8]: fill.append(t)
    mx(1, 36)
    ex(1, 0, 36, v1[8:]); ex(1, 1, 36)
    adv = [f"s_mov_b32 {s(sDELTA)}, {SLOT}", f"s_add_u32 {s(sSLOT)}, {s(sSLOT)}, 1", f"s_cmp_eq_u32 {s(sSLOT)}, {NS}",
           f"s_cselect_b32 {s(sDELTA)}, {(-(NS-1)*SLOT) & 0xffffffff:#x}, {s(sDELTA)}", f"s_cselect_b32 {s(sSLOT)}, 0, {s(sSLOT)}"]
    for t in adv: fill.append((t, 2, 50))
    for k in range(12): fill.append((f"v_add_u32 {v(vAK+k)}, {s(sDELTA)}, {v(vAK+k)}", 4, 50))
    mf = [(QK(n, qb), 0 if n < 8 else 3*(n - 8) + 1) for n in range(16) for qb in range(2)]
    for u in range(2):
        for qb in range(2):
            mf += [(PV(u, qb, dt), needf[(u, qb)]) for dt in range(8)] + [(LS(u, qb), needf[(u, qb)])]
    weave(a, mf, fill, CF.get("budget", 8))
    a.wait_lgkm0()
    a("s_waitcnt vmcnt(8)")
    a(f"s_cmp_eq_u32 {s(sW8)}, 1")
    a(f"s_mov_b32 {s(sW8)}, 0")
    a("s_cbranch_scc1 L_att_w")
    a("s_waitcnt vmcnt(0)")
    a.label("L_att_w", soft=True)
    a(f"s_add_u32 {s(sT)}, {s(sT)}, 1")
    a(f"s_cmp_lt_u32 {s(sT)}, 16")
    a("s_cbranch_scc1 L_att")
    a("s_setprio 0")

def finalize(a):
    a(f"v_rcp_f32 {v(vT0)}, {v(vL)}")
    a(f"v_rcp_f32 {v(vT1)}, {v(vL+4)}")
    a(f"v_lshlrev_b32 {v(vT2)}, 4, {v(vL0)}")
    a(f"s_lshl_b32 {s(sOST)}, {s(sB)}, 5")
    a(f"s_add_u32 {s(sOST)}, {s(sOST)}, {s(sMYH)}")
    a(f"s_lshl_b32 {s(sOST)}, {s(sOST)}, 15")
    a(f"s_lshl_b32 {s(sTMP)}, {s(sW4)}, 11")
    a(f"s_add_u32 {s(sOST)}, {s(sOST)}, {s(sTMP)}")
    for m in range(4):
        for qb in range(2):
            d = vS + 8*m + 4*qb
            for hb in range(2):
                o = vO + 8*(2*m + hb) + 4*qb
                for r in range(4): a(f"v_mul_f32 {v(o+r)}, {v(o+r)}, {v(vT0+qb)}")
                a(f"v_cvt_pk_bf16_f32 {v(d+2*hb)}, {v(o)}, {v(o+1)}")
                a(f"v_cvt_pk_bf16_f32 {v(d+2*hb+1)}, {v(o+2)}, {v(o+3)}")
            a(f"buffer_store_dwordx4 {v(d,4)}, {v(vT2)}, {s(sO,4)}, {s(sOST)} offen offset:{qb*1024}{CF.get('ostore', ' sc1')}", "ost")
        if m < 3: a(f"s_add_u32 {s(sOST)}, {s(sOST)}, 8192")

def one_lane(a, name, wave, body, cond=None):
    if wave is not None:
        a(f"s_cmp_eq_u32 {s(sWAVE)}, {wave}")
        a(f"s_cbranch_scc0 {name}")
    if cond:
        a(cond); a(f"s_cbranch_scc0 {name}")
    n = len(a.vm)
    body[0]()
    a(f"s_mov_b64 {s(sEX,2)}, exec")
    a("s_mov_b64 exec, 1")
    body[1]()
    a(f"s_mov_b64 exec, {s(sEX,2)}")
    del a.vm[n:]; del a.vmdst[n:]
    a.label(name, soft=True)

def flag_store(a, name, wave, val, soffs):
    def pre():
        a(f"v_mov_b32 {v(vT0)}, {val}"); a(f"v_mov_b32 {v(vT1)}, 0")
    def st():
        for so, imm in soffs:
            if imm: a(f"s_add_u32 {s(sTMP)}, {s(so)}, {imm}")
            a(f"buffer_store_dword {v(vT0)}, {v(vT1)}, {s(sO,4)}, {s(sTMP if imm else so)} offen sc1")
    one_lane(a, name, wave, (pre, st))

def spin(a, name, reg, areg, srd_, soff, val):
    a(f"s_mov_b32 {s(sSPIN)}, 0")
    a.label(name + "_c", soft=True)
    a(f"v_cmp_ne_u32 vcc, {val}, {v(reg)}")
    a(f"s_cbranch_vccz {name}_ok")
    a(f"s_add_u32 {s(sSPIN)}, {s(sSPIN)}, 1")
    a(f"s_cmp_gt_u32 {s(sSPIN)}, 0x40000")
    a(f"s_cbranch_scc1 {name}_ok")
    a(f"s_sleep {CF.get('sleep', 4)}")
    a(f"buffer_load_dword {v(reg)}, {v(areg)}, {s(srd_,4)}, {soff} offen sc1")
    a.vm.pop(); a.vmdst.pop()
    a.raw("    s_waitcnt vmcnt(0)")
    a(f"s_branch {name}_c")
    a.label(name + "_ok", soft=True)

def pack_dma(a):
    t = vVF
    a(f"s_mul_i32 {s(sTMP)}, {s(sW4)}, 320")
    for p in range(5):
        a(f"v_add_u32 {v(vT0)}, {s(sTMP)}, {v(vL0)}")
        if p: a(f"v_add_u32 {v(vT0)}, {64*p}, {v(vT0)}")
        a(f"v_mul_u32_u24 {v(vT1)}, 52429, {v(vT0)}")
        a(f"v_lshrrev_b32 {v(vT1)}, 21, {v(vT1)}")
        a(f"v_mul_u32_u24 {v(vT1)}, 640, {v(vT1)}")
        a(f"v_lshl_add_u32 {v(t+p)}, {v(vT0)}, 4, {v(vT1)}")
        if 0 < p < 4: a(f"v_subrev_u32 {v(t+p)}, {1024*p}, {v(t+p)}")
    a(f"s_lshr_b32 {s(sTMP)}, s2, 1"); a(f"s_mul_i32 {s(sTMP)}, {s(sTMP)}, 40960")
    a(f"s_and_b32 {s(sTMP2)}, s2, 1"); a(f"s_mul_i32 {s(sTMP2)}, {s(sTMP2)}, 640"); a(f"s_add_u32 {s(sTMP)}, {s(sTMP)}, {s(sTMP2)}")
    a(f"s_mul_i32 {s(sTMP2)}, {s(sW4)}, 5120")
    a(f"s_add_u32 m0, {s(sTMP2)}, {WBASE}")
    fl = CF.get("pkf", " nt")
    for p in range(4):
        a(f"buffer_load_dwordx4 {v(t+p)}, {s(sWO,4)}, {s(sTMP)} offen offset:{p*1024}{fl} lds", "pk")
    a(f"s_add_u32 m0, {s(sTMP2)}, {WBASE + 4096}")
    a(f"buffer_load_dwordx4 {v(t+4)}, {s(sWO,4)}, {s(sTMP)} offen{fl} lds", "pk")

def pack_store(a):
    d = vKF
    a(f"v_lshrrev_b32 {v(vT0)}, 2, {v(vL0)}")
    a(f"v_mul_u32_u24 {v(vT0)}, 640, {v(vT0)}")
    a(f"v_and_b32 {v(vT1)}, 3, {v(vL0)}")
    a(f"v_lshl_add_u32 {v(vT0)}, {v(vT1)}, 3, {v(vT0)}")
    a(f"s_mul_i32 {s(sTMP)}, {s(sW4)}, 160"); a(f"s_add_u32 {s(sTMP)}, {s(sTMP)}, {WBASE}")
    a(f"v_add_u32 {v(vT0)}, {s(sTMP)}, {v(vT0)}")
    for i in range(5):
        a(f"ds_read_b64_tr_b16 {v(d+4*i,2)}, {v(vT0)} offset:{32*i}")
        a(f"ds_read_b64_tr_b16 {v(d+4*i+2,2)}, {v(vT0)} offset:{32*i+10240}")
    a(f"v_lshlrev_b32 {v(vT1)}, 4, {v(vL0)}")
    a(f"s_mul_i32 {s(sTMP)}, s2, 20480"); a(f"s_mul_i32 {s(sTMP2)}, {s(sW4)}, 5120")
    a(f"s_add_u32 {s(sTMP)}, {s(sTMP)}, {s(sTMP2)}"); a(f"s_add_u32 {s(sTMP)}, {s(sTMP)}, {WOP}")
    a(f"s_add_u32 {s(sTMP2)}, {s(sTMP)}, 4096")
    for i in range(5):
        a(f"buffer_store_dwordx4 {v(d+4*i,4)}, {v(vT1)}, {s(sO,4)}, {s(sTMP if i < 4 else sTMP2)} offen offset:{(i%4)*1024}{CF.get('psf', ' sc1')}", "pst")

def op_setup(a):
    for i in range(4):
        a(f"s_add_u32 {s(sTMP)}, {s(sW4)}, {i}"); a(f"s_and_b32 {s(sTMP)}, {s(sTMP)}, 3"); a(f"s_lshl_b32 {s(sTMP)}, {s(sTMP)}, 10")
        a(f"v_lshl_add_u32 {v(oOL+i)}, {v(vL0)}, 4, {s(sTMP)}")
    a(f"v_lshlrev_b32 {v(oLN)}, 4, {v(vL0)}")
    a(f"s_lshl_b32 {s(sOBASE)}, {s(sOB)}, 2"); a(f"s_add_u32 {s(sOBASE)}, {s(sOBASE)}, {s(sW4)}")
    a(f"s_add_u32 {s(sPB)}, {s(sOBASE)}, 8"); a(f"s_mul_i32 {s(sPB)}, {s(sPB)}, {FST}"); a(f"s_add_u32 {s(sPB)}, {s(sPB)}, {FLG}")
    a(f"s_lshl_b32 {s(sOBASE)}, {s(sOBASE)}, 18")
    a(f"s_lshl_b32 {s(sTMP)}, {s(sRH)}, 12"); a(f"s_add_u32 {s(sOBASE)}, {s(sOBASE)}, {s(sTMP)}")
    a(f"s_mul_i32 {s(sWBASE)}, {s(sW4)}, {32*40960}"); a(f"s_mul_i32 {s(sTMP)}, {s(sNB)}, 5120")
    a(f"s_add_u32 {s(sWBASE)}, {s(sWBASE)}, {s(sTMP)}"); a(f"s_add_u32 {s(sWBASE)}, {s(sWBASE)}, {WOP}")
    a(f"s_lshr_b32 {s(sTMP)}, {s(sNB)}, 2"); a(f"s_lshl_b32 {s(sPA)}, {s(sW4)}, 1"); a(f"s_add_u32 {s(sPA)}, {s(sPA)}, {s(sTMP)}")
    a(f"s_mul_i32 {s(sPA)}, {s(sPA)}, {FST}"); a(f"s_add_u32 {s(sPA)}, {s(sPA)}, {FLG}")
    a(f"v_and_b32 {v(oT)}, 31, {v(vL0)}"); a(f"v_lshlrev_b32 {v(oT)}, 2, {v(oT)}")
    a(f"v_and_b32 {v(oT2)}, 3, {v(vL0)}"); a(f"v_bfe_u32 {v(oPL)}, {v(vL0)}, 2, 1")
    a(f"v_lshl_add_u32 {v(oT2)}, {v(oT2)}, 2, {v(oPL)}")
    a(f"s_lshl_b32 {s(sTMP)}, {s(sRH)}, 1"); a(f"v_add_lshl_u32 {v(oT2)}, {v(oT2)}, {s(sTMP)}, 2")
    a(f"s_lshl_b32 {s(sLW)}, {s(sW4)}, 13")

def op_index(a, k):
    a(f"s_add_u32 {s(sNL)}, {s(sKR)}, {k % 16}"); a(f"s_and_b32 {s(sNL)}, {s(sNL)}, 15")
    if k >= 16: a(f"s_add_u32 {s(sNL)}, {s(sNL)}, 16")

def op_ld_o(a, k, reg, tag):
    op_index(a, k)
    a(f"s_lshl_b32 {s(sTMP)}, {s(sNL)}, 13"); a(f"s_add_u32 {s(sTMP)}, {s(sTMP)}, {s(sOBASE)}")
    for i in range(4):
        a(f"buffer_load_dwordx4 {v(reg+4*i,4)}, {v(oOL+i)}, {s(sO,4)}, {s(sTMP)} offen{CF.get('olf', ' sc1')}", tag)

def op_w_off(a, k):
    op_index(a, k)
    a(f"s_mul_i32 {s(sTMP)}, {s(sNL)}, 40960"); a(f"s_add_u32 {s(sTMP)}, {s(sTMP)}, {s(sWBASE)}")
    a(f"s_add_u32 {s(sTMP2)}, {s(sTMP)}, 4096")

def op_ld_w(a, k, reg, tag):
    op_w_off(a, k)
    for i in range(5):
        a(f"buffer_load_dwordx4 {v(reg+4*i,4)}, {v(oLN)}, {s(sO,4)}, {s(sTMP if i < 4 else sTMP2)} offen offset:{(i%4)*1024}{CF.get('wlf', ' sc1')}", tag)

def op_dma_w(a, k, lds, tag):
    op_w_off(a, k)
    a(f"s_add_u32 m0, {s(sLW)}, {lds}")
    for i in range(4):
        a(f"buffer_load_dwordx4 {v(oLN)}, {s(sO,4)}, {s(sTMP)} offen offset:{i*1024}{CF.get('wlf', ' sc1')} lds", tag)
    a(f"s_add_u32 m0, {s(sLW)}, {lds + 4096}")
    a(f"buffer_load_dwordx4 {v(oLN)}, {s(sO,4)}, {s(sTMP2)} offen{CF.get('wlf', ' sc1')} lds", tag)

def op_mfma(a, wreg, oreg, first, after=None):
    for nt in range(5):
        for i in range(4):
            acc = v(oACC + 20*i + 4*nt, 4)
            a(f"{MF} {acc}, {v(wreg+4*nt,4)}, {v(oreg+4*i,4)}, {'0' if first else acc}")
        if after: after(nt)

def op_reduce(a):
    rg = oG
    a("s_barrier")
    a(f"s_lshl_b32 {s(sTMP)}, {s(sW4)}, 14")
    a(f"v_add_u32 {v(vT0)}, {s(sTMP)}, {v(oLN)}")
    for i in range(1, 4):
        for nt in range(5):
            a(f"ds_write_b128 {v(vT0)}, {v(oACC+20*i+4*nt,4)} offset:{(5*(i-1)+nt)*1024}")
    for i in range(1, 4):
        a(f"s_sub_u32 {s(sTMP)}, {s(sW4)}, {i}"); a(f"s_and_b32 {s(sTMP)}, {s(sTMP)}, 3"); a(f"s_lshl_b32 {s(sTMP)}, {s(sTMP)}, 14")
        a(f"s_add_u32 {s(sTMP)}, {s(sTMP)}, {5120*(i-1)}")
        a(f"v_add_u32 {v(vKD+i)}, {s(sTMP)}, {v(oLN)}")
    a(f"s_lshl_b32 {s(sTMP)}, {s(sOB)}, 7"); a(f"s_lshl_b32 {s(sTMP2)}, {s(sRH)}, 6"); a(f"s_add_u32 {s(sTMP)}, {s(sTMP)}, {s(sTMP2)}")
    a(f"s_lshl_b32 {s(sTMP2)}, {s(sW4)}, 4"); a(f"s_add_u32 {s(sTMP)}, {s(sTMP)}, {s(sTMP2)}")
    a(f"s_mul_i32 {s(sTMP)}, {s(sTMP)}, 1280"); a(f"s_mul_i32 {s(sTMP2)}, {s(sNB)}, 160"); a(f"s_add_u32 {s(sTMP)}, {s(sTMP)}, {s(sTMP2)}")
    a(f"v_mul_u32_u24 {v(oT)}, 1280, {v(vL2)}")
    a(f"v_lshl_add_u32 {v(oT)}, {v(vL1)}, 3, {v(oT)}")
    a("s_waitcnt lgkmcnt(0)")
    a("s_barrier")
    for nt in range(5):
        for i in range(1, 4):
            a(f"ds_read_b128 {v(rg+12*nt+4*(i-1),4)}, {v(vKD+i)} offset:{nt*1024}")
    for nt in range(5):
        r = rg + 12*nt; c = oACC + 4*nt
        for k in range(4):
            a(f"v_add_f32 {v(c+k)}, {v(c+k)}, {v(r+k)}")
            a(f"v_add_f32 {v(r+4+k)}, {v(r+4+k)}, {v(r+8+k)}")
        for k in range(4):
            a(f"v_add_f32 {v(c+k)}, {v(c+k)}, {v(r+4+k)}")
        a(f"v_cvt_pk_bf16_f32 {v(r)}, {v(c)}, {v(c+1)}")
        a(f"v_cvt_pk_bf16_f32 {v(r+1)}, {v(c+2)}, {v(c+3)}")
        a(f"buffer_store_dwordx2 {v(r,2)}, {v(oT)}, {s(sOUT,4)}, {s(sTMP)} offen offset:{32*nt}{CF.get('outf', '')}", "out")

def dump_stamps(a, off):
    a(f"s_lshl_b32 {s(sTMP)}, s2, 10")
    a(f"s_add_u32 {s(sTMP)}, {s(sTMP)}, {0x2000000 + off}")
    a(f"v_lshlrev_b32 {v(vT1)}, 2, {v(vL0)}")
    a(f"buffer_store_dword v0, {v(vT1)}, {s(sO,4)}, {s(sTMP)} offen")
    a("s_waitcnt vmcnt(0)")

def prologue(a):
    a.raw(f".globl {K1}"); a.raw(".p2align 8"); a.raw(f".type {K1},@function"); a.label(K1)
    a("s_cmp_ge_u32 s2, 256"); a("s_cbranch_scc1 L_end")
    a(f"s_load_dwordx16 {s(sPTR,16)}, s[0:1], 0")
    a(f"v_lshrrev_b32 {v(vT0)}, 6, v0")
    a(f"v_and_b32 {v(vL0)}, 63, v0")
    a(f"v_readfirstlane_b32 {s(sWAVE)}, {v(vT0)}")
    a(f"v_lshrrev_b32 {v(vL1)}, 4, {v(vL0)}")
    a(f"v_and_b32 {v(vL2)}, 15, {v(vL0)}")
    a(f"s_and_b32 {s(sTMP)}, s2, 7"); a(f"s_lshr_b32 {s(sTMP2)}, s2, 3")
    a(f"s_and_b32 {s(sOB)}, {s(sTMP)}, 1"); a(f"s_lshl_b32 {s(sOB)}, {s(sOB)}, 3")
    a(f"s_lshr_b32 {s(sTMP3)}, {s(sTMP2)}, 2"); a(f"s_add_u32 {s(sB)}, {s(sOB)}, {s(sTMP3)}")
    a(f"s_and_b32 {s(sNB)}, {s(sTMP2)}, 3")
    a(f"s_mul_i32 {s(sSX)}, {s(sNB)}, 5"); a(f"s_lshr_b32 {s(sSX)}, {s(sSX)}, 1"); a(f"s_add_u32 {s(sSX)}, {s(sSX)}, {s(sTMP3)}")
    a(f"s_sub_u32 {s(sSW)}, {s(sSX)}, 10"); a(f"s_cmp_ge_u32 {s(sSX)}, 10"); a(f"s_cselect_b32 {s(sSX)}, {s(sSW)}, {s(sSX)}")
    if not CF.get("qrot", 1): a(f"s_mov_b32 {s(sSX)}, 0")
    a(f"s_lshl_b32 {s(sSW)}, {s(sSX)}, 1")
    a(f"s_and_b32 {s(sRH)}, {s(sTMP)}, 6")
    a(f"s_lshl_b32 {s(sHA)}, {s(sRH)}, 2"); a(f"s_add_u32 {s(sHA)}, {s(sHA)}, {s(sNB)}")
    a(f"s_and_b32 {s(sW4)}, {s(sWAVE)}, 3"); a(f"s_and_b32 {s(sGRP)}, {s(sWAVE)}, 4")
    a(f"s_add_u32 {s(sMYH)}, {s(sHA)}, {s(sGRP)}")
    a(f"s_lshl_b32 {s(sQS)}, {s(sMYH)}, 8")
    a(f"s_mul_i32 {s(sXB)}, {s(sB)}, 163840")
    a(f"s_lshl_b32 {s(sMX)}, {s(sWAVE)}, 11"); a(f"s_add_u32 {s(sMX)}, {s(sMX)}, {WBASE}")
    a(f"s_lshl_b32 {s(sMW)}, {s(sGRP)}, 12"); a(f"s_lshl_b32 {s(sM0W)}, {s(sW4)}, 11"); a(f"s_add_u32 {s(sMW)}, {s(sMW)}, {s(sM0W)}")
    a(f"s_add_u32 {s(sMW)}, {s(sMW)}, {2*SLOT}")
    addr_stage(a)
    a("s_waitcnt lgkmcnt(0)")
    srd(a, sX, sPTR + 0, 2621440); srd(a, sWQ, sPTR + 6, 5242880); srd(a, sO, sPTR + 14, 0x4000000)
    stamp(a, 0); stamp(a, 9, "s_memtime")
    dma_x(a, 0, "x0"); dma_w(a, 0, "u0"); dma_w(a, 1, "u1"); dma_x(a, 1, "x1"); dma_w(a, 2, "u2")
    a(f"s_lshr_b32 {s(sFP)}, s2, 6"); a(f"s_lshl_b32 {s(sFP)}, {s(sFP)}, 1"); a(f"s_and_b32 {s(sFO)}, s2, 1"); a(f"s_add_u32 {s(sFP)}, {s(sFP)}, {s(sFO)}")
    a(f"s_mul_i32 {s(sFP)}, {s(sFP)}, {FST}"); a(f"s_bfe_u32 {s(sFO)}, s2, 0x50001"); a(f"s_lshl_b32 {s(sFO)}, {s(sFO)}, 2")
    a(f"s_add_u32 {s(sFP)}, {s(sFP)}, {s(sFO)}"); a(f"s_add_u32 {s(sFP)}, {s(sFP)}, {FLG}")
    a(f"s_lshl_b32 {s(sFO)}, {s(sB)}, 2"); a(f"s_lshr_b32 {s(sTMP3)}, {s(sRH)}, 1"); a(f"s_add_u32 {s(sFO)}, {s(sFO)}, {s(sTMP3)}")
    a(f"s_mul_i32 {s(sFO)}, {s(sFO)}, {FST}"); a(f"s_lshl_b32 {s(sTMP3)}, {s(sNB)}, 4"); a(f"s_add_u32 {s(sFO)}, {s(sFO)}, {s(sTMP3)}")
    a(f"s_add_u32 {s(sFO)}, {s(sFO)}, {FLG + 8*FST}")
    def pre():
        for r in range(4): a(f"v_mov_b32 {v(vS+r)}, 0")
    def clr():
        a(f"buffer_store_dword {v(vS)}, {v(vS)}, {s(sO,4)}, {s(sFP)} offen sc1")
        a(f"buffer_store_dwordx4 {v(vS,4)}, {v(vS)}, {s(sO,4)}, {s(sFO)} offen sc1")
        a(f"s_add_u32 {s(sTMP)}, {s(sFO)}, {64*FST}")
        a(f"buffer_store_dwordx4 {v(vS,4)}, {v(vS)}, {s(sO,4)}, {s(sTMP)} offen sc1")
    one_lane(a, "L_clr", 4, (pre, clr))
    a(f"s_lshl_b32 {s(sTMP3)}, {s(sW4)}, 2"); a(f"s_add_u32 {s(sFO)}, {s(sFO)}, {s(sTMP3)}")
    a(f"s_lshr_b32 {s(sTMP2)}, s2, 3")
    a(f"s_add_u32 {s(sOB)}, {s(sOB)}, {s(sRH)}")
    a(f"s_lshr_b32 {s(sTMP3)}, {s(sTMP2)}, 4"); a(f"s_add_u32 {s(sOB)}, {s(sOB)}, {s(sTMP3)}")
    a(f"s_bfe_u32 {s(sRH)}, {s(sTMP2)}, 0x10003")
    a(f"s_and_b32 {s(sNB)}, {s(sTMP2)}, 7")
    a(f"s_add_u32 {s(sSIGT)}, {s(sNB)}, 1")
    kr = CF.get("krot", 2)
    if kr == 0: a(f"s_mov_b32 {s(sKR)}, 0")
    else:
        a(f"s_lshl_b32 {s(sKR)}, {s(sNB)}, 1")
        if kr == 2:
            a(f"s_lshr_b32 {s(sTMP3)}, {s(sTMP2)}, 3"); a(f"s_lshl_b32 {s(sTMP3)}, {s(sTMP3)}, 2"); a(f"s_add_u32 {s(sKR)}, {s(sKR)}, {s(sTMP3)}")
    rot = CF.get("rot", 0)
    if rot == 0: a(f"s_mov_b32 {s(sROT)}, 0")
    elif rot == 2: a(f"s_and_b32 {s(sROT)}, s2, 15")
    elif rot == 3:
        a(f"s_mul_i32 {s(sROT)}, s2, 0x9E3779B1"); a(f"s_lshr_b32 {s(sROT)}, {s(sROT)}, 28")
    a(f"s_lshl_b32 {s(sM0W)}, {s(sW4)}, 12")
    a(f"s_lshl_b32 {s(sMK)}, {s(sGRP)}, 13"); a(f"s_add_u32 {s(sMK)}, {s(sMK)}, {s(sM0W)}")
    a(f"s_lshl_b32 {s(sKVA)}, {s(sB)}, 5"); a(f"s_add_u32 {s(sKVA)}, {s(sKVA)}, {s(sHA)}"); a(f"s_lshl_b32 {s(sKVA)}, {s(sKVA)}, 18")
    a(f"s_add_u32 {s(sKVB)}, {s(sKVA)}, {4 << 18}")
    srd(a, sK, sPTR + 2, 134217728); srd(a, sV, sPTR + 4, 134217728)
    srd(a, sWO, sPTR + 8, 5242880); srd(a, sOUT, sPTR + 10, 2621440); srd(a, sDBG, sPTR + 12, 256)
    addr_kv(a)
    a(f"s_lshl_b32 {s(sTMP3)}, {s(sGRP)}, 12"); a(f"s_add_u32 {s(sTMP3)}, {s(sTMP3)}, {2*SLOT}")
    addr_tr(a, s(sTMP3), True)
    addr_xread(a)
    a(f"s_lshr_b32 {s(sTMP3)}, {s(sGRP)}, 2")

def kernel(a):
    D = CF.get("D", 2)
    prologue(a)
    kvh = CF.get("kvh", [1, 3, 5, 7, 9, 11, 13, 15])
    for h in range(20):
        a.wait_vm(f"u{h}", f"x{h//2}", *(["u19"] if h == 18 else []))
        a("s_barrier")
        if h % 2 == 0: stamp(a, 14 + h // 2)
        def mid(h=h):
            if 1 <= h <= 16: dma_w(a, h + 3, f"u{h+3}") if h + 3 < 20 else None
            if h == 0: pass
            if h % 2 == 0 and 2 <= h <= 16: dma_x(a, (h // 2 + 1) % 2, f"x{h//2+1}")
            ps = [p for p in range(8) if kvh[p] == h]
            if ps:
                kv_off(a, sKVA, s(sTMP3))
                for p in ps:
                    a(f"s_add_u32 m0, {s(sMK)}, {16384*(p//4)}")
                    kv_piece(a, p, "t01")
            if h == 18:
                a(f"s_cmp_eq_u32 {s(sGRP)}, 0"); a("s_cbranch_scc1 L_no2")
                dma_kv(a, 2, "t2")
                a.label("L_no2", soft=True)
        if h == 0:
            def mid0():
                dma_w(a, 3, "u3")
                ps = [p for p in range(8) if kvh[p] == 0]
                if ps:
                    kv_off(a, sKVA, s(sTMP3))
                    for p in ps:
                        a(f"s_add_u32 m0, {s(sMK)}, {16384*(p//4)}")
                        kv_piece(a, p, "t01")
            qproj_half(a, h, mid0)
        else: qproj_half(a, h, mid)
    q_convert(a)
    att_init(a)
    stamp(a, 1); stamp(a, 10, "s_memtime")
    a(f"s_mov_b32 {s(sW8)}, 0")
    a(f"s_cmp_eq_u32 {s(sGRP)}, 0"); a("s_cbranch_scc0 L_roleB")
    a("s_waitcnt vmcnt(0)")
    a("s_branch L_att0")

    a.label("L_roleB")
    a.vm = ["t01"] * 8 + ["t2"] * 8; a.vmdst = [set() for _ in a.vm]
    tp = CF.get("tpack", 1)
    for t in range(16):
        a.wait_vm(f"t{t}", *(["t01"] if t == 1 else []), *(["pk"] if t == tp + D else []), *(["pst"] if t == tp + 2*D + 1 else []))
        if t == 15:
            a(f"s_cmp_eq_u32 {s(sWAVE)}, 4"); a("s_cbranch_scc0 L_cf_ok")
            spin(a, "L_cf", vCF, vCF + 1, sDBG, "0", 16)
        a("s_barrier")
        if 1 <= t <= 8:
            def pre():
                a(f"v_mov_b32 {v(vT0)}, 1"); a(f"s_and_b32 {s(sTMP)}, s2, 15"); a(f"s_lshl_b32 {s(sTMP)}, {s(sTMP)}, 2"); a(f"v_mov_b32 {v(vT1)}, {s(sTMP)}")
            one_lane(a, f"L_sig{t}", 4, (pre, lambda: a(f"buffer_atomic_add {v(vT0)}, {v(vT1)}, {s(sDBG,4)}, 0 offen")), f"s_cmp_eq_u32 {s(sSIGT)}, {t}")
        if 9 <= t <= 12:
            a(f"s_and_b32 {s(sTMP)}, {s(sNB)}, 3"); a(f"s_add_u32 {s(sTMP)}, {s(sTMP)}, {s(sWAVE)}"); a(f"s_lshl_b32 {s(sTMP2)}, {s(sW4)}, 4")
            a(f"s_add_u32 {s(sTMP)}, {s(sTMP)}, {s(sTMP2)}")
            a(f"s_cmp_eq_u32 {s(sTMP)}, {t - 5}"); a(f"s_cbranch_scc0 L_cfi{t}")
            a(f"v_lshlrev_b32 {v(vCF+1)}, 2, {v(vL2)}")
            a(f"buffer_load_dword {v(vCF)}, {v(vCF+1)}, {s(sDBG,4)}, 0 offen sc1"); a.vm.pop(); a.vmdst.pop()
            a.label(f"L_cfi{t}", soft=True)
        if t == tp: pack_dma(a)
        if t == tp + 2*D + 1: flag_store(a, "L_fpk", 4, "1", [(sFP, 0)])
        if t == 0: dma_kv(a, 3, "t3")
        elif t + D >= 4: dma_kv(a, t + D, f"t{t+D}")
        if t == tp + D: pack_store(a)
    a(f"s_mov_b32 {s(sW8)}, {D - 2}")
    a.wait_vm("t16")
    a.vm, a.vmdst = [], []

    a.label("L_att0")
    att_loop(a)
    stamp(a, 2); stamp(a, 11, "s_memtime")
    a(f"s_cmp_eq_u32 {s(sGRP)}, 0"); a("s_cbranch_scc0 L_fin")
    a("s_barrier")
    dma_kv(a, 16 + D, f"t{D}")
    a.label("L_fin", soft=True)
    a("s_nop 3")
    finalize(a)
    a(f"s_cmp_eq_u32 {s(sGRP)}, 0"); a("s_cbranch_scc0 L_tailB")

    nov, lag = CF.get("nov", 10), D - 1
    t0 = 16 - lag - nov
    assert t0 - D >= 1
    G = lambda m: oG + 36*(m % 4)
    tsig = CF.get("tsig", 2)
    units = {}
    kb = 16 + 4
    def stage(lds, tag="wl"):
        nonlocal kb
        op_dma_w(a, kb, lds, tag); units[kb] = lds; kb += 1
    for t in range(1, 16):
        m_ld, m_do = t - t0, t - t0 - lag
        a.wait_vm(f"t{t}", *(["ost"] if t == tsig else []), f"g{m_do}", *(["poll"] if t == t0 else []))
        if t >= 8 and not CF.get("tl"): stamp(a, 56 + t - 8)
        a("s_barrier")
        if t == 1: op_setup(a)
        if t == tsig: flag_store(a, "L_foa", None, "1", [(sFO, 0)])
        if t == t0 - D and not CF.get("nopoll"):
            a(f"buffer_load_dword {v(oPL)}, {v(oT)}, {s(sO,4)}, {s(sPA)} offen sc1", "poll")
            a(f"buffer_load_dword {v(oPL2)}, {v(oT2)}, {s(sO,4)}, {s(sPB)} offen sc1", "poll")
        if t == t0 and not CF.get("nopoll"):
            spin(a, "L_pk", oPL, oT, sO, s(sPA), 1)
            spin(a, "L_pa", oPL2, oT2, sO, s(sPB), 1)
        if 0 <= m_ld < nov:
            op_ld_w(a, m_ld, G(m_ld), f"g{m_ld}"); op_ld_o(a, m_ld, G(m_ld) + 20, f"g{m_ld}")
        if t + D < 16: dma_kv(a, 16 + t + D, f"t{t+D}")
        if t == CF.get("twl", 11): stage(WBASE)
        if t >= 13: stage(((t - 1) % NS) * SLOT)
        if 0 <= m_do < nov: op_mfma(a, G(m_do), G(m_do) + 20, m_do == 0)
    stamp(a, 4)
    a("s_barrier")
    stamp(a, 5)
    stage(3*SLOT)
    rest = list(range(nov, 16))
    for m in rest[:3]:
        op_ld_w(a, m, G(m), f"g{m}"); op_ld_o(a, m, G(m) + 20, f"g{m}")
    for i, m in enumerate(rest):
        if i + 3 < len(rest):
            n = rest[i + 3]
            op_ld_w(a, n, G(n), f"g{n}"); op_ld_o(a, n, G(n) + 20, f"g{n}")
        a.wait_vm(f"g{m}")
        op_mfma(a, G(m), G(m) + 20, m == 0)
    wr = [oG + 20*k for k in range(4)]
    orr = [oG + 80 + 16*k for k in range(4)]
    for k in range(4): op_ld_w(a, 16 + k, wr[k], f"w{16+k}")
    stamp(a, 12)
    a(f"s_add_u32 {s(sPB)}, {s(sPB)}, {64*FST}")
    a(f"buffer_load_dword {v(oPL2)}, {v(oT2)}, {s(sO,4)}, {s(sPB)} offen sc1", "poll")
    a(f"v_add_u32 {v(vKD)}, {s(sLW)}, {v(oLN)}")
    a(f"v_add_u32 {v(vKD+1)}, {2*SLOT}, {v(vKD)}")
    a(f"v_add_u32 {v(vKD+2)}, {4*SLOT}, {v(vKD)}")
    a.wait_vm("poll")
    if not CF.get("nopoll"): spin(a, "L_pb", oPL2, oT2, sO, s(sPB), 1)
    stamp(a, 6)
    for k in range(4): op_ld_o(a, 16 + k, orr[k], f"o{16+k}")
    def lds_rd(k, nt):
        o = units[k]
        a(f"ds_read_b128 {v(wr[k%4]+4*nt,4)}, {v(vKD + o // (2*SLOT))} offset:{o % (2*SLOT) + 1024*nt}")
    for k in range(16, 32):
        a.wait_vm(f"o{k}", f"w{k}")
        if k == 24: stamp(a, 7)
        nxt = k + 4
        op_mfma(a, wr[k % 4], orr[k % 4], False, (lambda nt, nxt=nxt: lds_rd(nxt, nt)) if nxt in units else None)
        if nxt < 32:
            if nxt not in units: op_ld_w(a, nxt, wr[nxt % 4], f"w{nxt}")
            op_ld_o(a, nxt, orr[nxt % 4], f"o{nxt}")
    stamp(a, 8)
    op_reduce(a)
    if CF.get("stamps"):
        a("s_waitcnt vmcnt(0)")
        stamp(a, 3)
        a(f"s_cmp_eq_u32 {s(sWAVE)}, 0"); a("s_cbranch_scc0 L_end")
        dump_stamps(a, 0)
    a("s_endpgm")

    a.label("L_tailB")
    a("s_barrier")
    a("s_waitcnt vmcnt(0)")
    stamp(a, 3)
    flag_store(a, "L_fob", None, "1", [(sFO, 64*FST)])
    if CF.get("stamps"):
        a(f"s_cmp_eq_u32 {s(sWAVE)}, 4"); a("s_cbranch_scc0 L_end")
        dump_stamps(a, 256)
    a.label("L_end")
    a("s_endpgm")
    rare_path(a, 0); rare_path(a, 1)

def gen(cfg):
    CF.clear(); CF.update(cfg)
    a = Asm()
    kernel(a)
    body = a.text()
    probs = check_cfg(body)
    for p in probs: print("HAZARD", p, file=sys.stderr)
    assert not probs
    head = ("; @launch grid=(256,1,1) block=(512,1,1) lds=163840\n"
            '.amdgcn_target "amdgcn-amd-amdhsa--gfx950"\n.text\n')
    return head + body + f""".section .rodata,"a"
.p2align 6
.amdhsa_kernel {K1}
  .amdhsa_next_free_vgpr 256
  .amdhsa_next_free_sgpr 100
  .amdhsa_accum_offset 256
  .amdhsa_group_segment_fixed_size 0
  .amdhsa_kernarg_size 64
  .amdhsa_user_sgpr_count 2
  .amdhsa_user_sgpr_kernarg_segment_ptr 1
  .amdhsa_system_sgpr_workgroup_id_x 1
  .amdhsa_float_denorm_mode_32 3
.end_amdhsa_kernel
"""

if __name__ == "__main__":
    out = sys.argv[1]
    cfg = eval(sys.argv[2]) if len(sys.argv) > 2 else {}
    open(out, "w").write(gen(cfg))
```
